```python
import torch

def _softmax(x, axis=-1):
    return torch.softmax(x, dim=axis)
def _gelu(x):
    return torch.nn.functional.gelu(x, approximate="tanh")
def _silu(x):
    return torch.nn.functional.silu(x)
def _sigmoid(x):
    return torch.sigmoid(x)
def _layernorm(x, axis=-1, eps=1e-5):
    m = x.mean(dim=axis, keepdim=True)
    v = x.var(dim=axis, keepdim=True, unbiased=False)
    return (x - m) / torch.sqrt(v + eps)
def _scatter_add(tgt, idx, src, axis=0):
    return tgt.clone().index_add_(axis, idx, src)
def _segment_sum(src, seg, n):
    out = torch.zeros((n,) + src.shape[1:], dtype=src.dtype)
    return out.index_add_(0, seg, src)
def _pad(x, pw):
    flat = tuple(v for pair in reversed(pw) for v in pair)
    return torch.nn.functional.pad(x, flat)

kernel_name = 'recurrent_scan__ssm_conv_s4__moe_arch_mod__prompt'

def setup_inputs():

    _w = (lambda a: (lambda t: t.to(torch.bfloat16) if t.is_floating_point() else t)(torch.as_tensor(a)))
    def _A_setup():
        B, L, D, N = 1, 2048, 512, 128
        A_re = -(lambda _x: torch.exp(torch.as_tensor(_x)))((lambda *s: torch.randn(*s, dtype=torch.bfloat16) * 6.4)(D, N))
        A_im = torch.pi * (lambda *s: torch.randn(*s, dtype=torch.bfloat16) * 0.05)(D, N)
        B_re = (lambda *s: torch.randn(*s, dtype=torch.bfloat16) * 0.1)(D, N)
        B_im = (lambda *s: torch.randn(*s, dtype=torch.bfloat16) * 0.1)(D, N)
        C_re = (lambda *s: torch.randn(*s, dtype=torch.bfloat16) * 0.1)(D, N)
        C_im = (lambda *s: torch.randn(*s, dtype=torch.bfloat16) * 0.1)(D, N)
        log_dt = (lambda *s: torch.randn(*s, dtype=torch.bfloat16) * 0.05)(D) * 0.5 - 4.0
        Dskip = (lambda *s: torch.randn(*s, dtype=torch.bfloat16) * 0.05)(D)
        return {
            "u": _w((lambda *s: torch.randn(*s, dtype=torch.bfloat16) * 0.05)(B, L, D)),
            "A_re": _w(A_re),
            "A_im": _w(A_im),
            "B_re": _w(B_re),
            "B_im": _w(B_im),
            "C_re": _w(C_re),
            "C_im": _w(C_im),
            "log_dt": _w(log_dt),
            "Dskip": _w(Dskip),
        }
    _A_in = _A_setup()

    def _B_setup():
        B, S, D, F, C = 1, 2048, 512, 1792, 2
        return {
            "x": _w((lambda *s: torch.randn(*s, dtype=torch.bfloat16) * 0.05)(B, S, D)),
            "w_r": _w((lambda *s: torch.randn(*s, dtype=torch.bfloat16) * 3.2)(D)),
            "w_gate": _w((lambda *s: torch.randn(*s, dtype=torch.bfloat16) * 0.05)(D, F)),
            "w_up": _w((lambda *s: torch.randn(*s, dtype=torch.bfloat16) * 0.05)(D, F)),
            "w_down": _w((lambda *s: torch.randn(*s, dtype=torch.bfloat16) * 0.05)(F, D)),
        }
    _B_in = _B_setup()

    return {
        "A_u": _A_in["u"],
        "A_A_re": _A_in["A_re"],
        "A_A_im": _A_in["A_im"],
        "A_B_re": _A_in["B_re"],
        "A_B_im": _A_in["B_im"],
        "A_C_re": _A_in["C_re"],
        "A_C_im": _A_in["C_im"],
        "A_log_dt": _A_in["log_dt"],
        "A_Dskip": _A_in["Dskip"],
        "B_x": _B_in["x"],
        "B_w_r": _B_in["w_r"],
        "B_w_gate": _B_in["w_gate"],
        "B_w_up": _B_in["w_up"],
        "B_w_down": _B_in["w_down"],
    }

def reference(A_u, A_A_re, A_A_im, A_B_re, A_B_im, A_C_re, A_C_im, A_log_dt, A_Dskip, B_x, B_w_r, B_w_gate, B_w_up, B_w_down):
    def _A_ref(u, A_re, A_im, B_re, B_im, C_re, C_im, log_dt, Dskip):
        Bsz, L, D = u.shape
        dt = torch.exp(log_dt)[:, None]
        A = A_re + 1j * A_im
        Bc = B_re + 1j * B_im
        Cc = C_re + 1j * C_im
        logdA = dt * A
        dB = dt * Bc
        l = (lambda x, dt: x.to(dt))(torch.arange(L), A_re.dtype)
        P = torch.exp(logdA[:, :, None] * l[None, None, :])
        K = torch.einsum("dn,dnl,dn->dl", Cc, P, dB).real
        L2 = 2 * L
        Kp = _pad(K, ((0, 0), (0, L)))
        up = (lambda x, *d: x.permute(*d))(u, 0, 2, 1)
        up = _pad(up, ((0, 0), (0, 0), (0, L)))
        Kf = (lambda x, axes=(-2,-1): torch.fft.rfft2(x.float(), dim=axes))(Kp[:, None, :], axes=(-2, -1))
        Uf = (lambda x, axes=(-2,-1): torch.fft.rfft2(x.float(), dim=axes))(up[:, :, None, :], axes=(-2, -1))
        Yf = Uf * Kf[None, :, :, :]
        y = (lambda x, s, axes=(-2,-1): torch.fft.irfft2(x, s=s, dim=axes).to(torch.bfloat16))(Yf, (1, L2), axes=(-2, -1))[:, :, 0, :L]
        y = (lambda x, *d: x.permute(*d))(y, 0, 2, 1) + u * Dskip[None, None, :]
        return y

    def _B_ref(x, w_r, w_gate, w_up, w_down):
        B, S, D = x.shape
        C = 2
        r = x @ w_r
        idx = torch.argsort(-r, axis=-1)[:, :C]
        idx_e = (lambda x, n, axis: torch.repeat_interleave(x, n, dim=axis))(idx.reshape(B, C, 1), D, axis=2)
        x_sel = (lambda x, i, axis: torch.take_along_dim(x, i, dim=axis))(x, idx_e, axis=1)
        g = _silu(x_sel @ w_gate)
        u = x_sel @ w_up
        y = (g * u) @ w_down
        r_sel = _sigmoid((lambda x, i, axis: torch.take_along_dim(x, i, dim=axis))(r, idx, axis=1))
        y = y * r_sel.reshape(B, C, 1)
        b_off = (torch.arange(B) * S).reshape(B, 1)
        flat_idx = (idx + b_off).reshape(B * C)
        zero = (x * 0.0).reshape(B * S, D)
        upd = _scatter_add(zero, flat_idx, y.reshape(B * C, D), axis=0)
        return x + upd.reshape(B, S, D)

    x = A_u
    xn = _layernorm(x, axis=-1)
    s = _A_ref(xn, A_A_re, A_A_im, A_B_re, A_B_im, A_C_re, A_C_im, A_log_dt, A_Dskip)
    g = _silu(_B_ref(xn, B_w_r, B_w_gate, B_w_up, B_w_down))
    return x + s * g
```

```python
import re

TRANS = ('v_exp_f32','v_log_f32','v_rcp_f32','v_rsq_f32','v_sqrt_f32','v_sin_f32','v_cos_f32')
_reg = re.compile(r'(?<![\w.])(-?\|?)([vsa])(\d+|\[(\d+):(\d+)\])')

def regs_of(op):
    op = op.strip()
    out = set()
    if op in ('vcc',): return {('s',106),('s',107)}
    if op == 'vcc_lo': return {('s',106)}
    if op == 'vcc_hi': return {('s',107)}
    if op == 'exec': return {('s',126),('s',127)}
    if op == 'm0': return {('s',124)}
    m = re.fullmatch(r'-?(?:abs\()?\|?([vsa])(?:(\d+)|\[(\d+):(\d+)\])\|?\)?', op)
    if m:
        k = m.group(1)
        if m.group(2) is not None: out.add((k,int(m.group(2))))
        else:
            for i in range(int(m.group(3)), int(m.group(4))+1): out.add((k,i))
    return out

class Ins:
    def __init__(self, text):
        self.text = text
        t = text.split(';')[0].strip()
        parts = t.split(None,1)
        self.op = parts[0]
        rest = parts[1] if len(parts)>1 else ''
        ops=[]; cur=''; depth=0
        for ch in rest:
            if ch=='[': depth+=1
            if ch==']': depth-=1
            if ch==',' and depth==0: ops.append(cur.strip()); cur=''
            else: cur+=ch
        if cur.strip(): ops.append(cur.strip())
        self.mods=''
        if ops:
            l = ops[-1].split(None,1)
            ops[-1]=l[0]
            if len(l)>1: self.mods=l[1]
        self.ops=ops
        op=self.op
        self.valu = op.startswith('v_') and not op.startswith('v_mfma')
        self.mfma = op.startswith('v_mfma')
        self.salu = op.startswith('s_') and not op.startswith(('s_load','s_memreal','s_memtime','s_waitcnt','s_nop','s_barrier','s_branch','s_cbranch','s_endpgm','s_sleep','s_setprio'))
        self.vmem = op.startswith(('global_','buffer_'))
        self.ds = op.startswith('ds_')
        self.trans = op.replace('_e32','').replace('_e64','') in TRANS
        self.dpp = '_dpp' in op
        self.dot = op.startswith('v_dot')
        self.perml = op.startswith('v_permlane')
        self.rdlane = op.startswith(('v_readlane','v_readfirstlane'))
        R=[regs_of(o) for o in ops]
        self.w=set(); self.r=set()
        if self.mfma:
            self.w=R[0]; self.A=R[1]; self.B=R[2]; self.C=R[3]; self.r=R[1]|R[2]|R[3]
        elif self.valu:
            if self.perml: self.w=R[0]|R[1]; self.r=R[0]|R[1]
            else:
                self.w=set(R[0])
                for x in R[1:]: self.r|=x
                if op.startswith(('v_fmac','v_dot2c','v_pk_fmac')) or self.dpp: self.r|=R[0]
                if op.startswith(('v_add_co','v_addc_co','v_sub_co')): self.w|=R[1]
                if op.startswith('v_cndmask') and len(ops)==3: self.r|=regs_of('vcc')
        elif self.vmem:
            if '_load' in op: self.w=set(R[0]); [self.r.update(x) for x in R[1:]]
            else:
                for x in R: self.r|=x
                self.sdata = R[1] if op.startswith('global_') else R[0]
        elif self.ds:
            if op.startswith('ds_read'): self.w=set(R[0]); [self.r.update(x) for x in R[1:]]
            else:
                for x in R: self.r|=x
            if 'addtid' in op: self.r|={('s',124)}
        elif op.startswith('s_'):
            if op.startswith(('s_cmp','s_cbranch','s_branch','s_waitcnt','s_nop','s_barrier','s_endpgm','s_sleep','s_setprio','s_bitcmp')):
                for x in R: self.r|=x
            elif R:
                self.w=set(R[0]); [self.r.update(x) for x in R[1:]]
                if 'saveexec' in op: self.w|=regs_of('exec')
    def states(self):
        if self.op=='s_nop': return int(self.ops[0],0)+1
        return 1

def need(p, c):
    n=0
    V=lambda s:{x for x in s if x[0] in 'va'}
    S=lambda s:{x for x in s if x[0]=='s'}
    if p.valu:
        pw=V(p.w)
        if c.mfma and pw & c.r: n=max(n,3 if p.dot else 2)
        if p.trans and c.valu and not c.trans and pw & c.r: n=max(n,1)
        if c.dpp and c.ops and pw & regs_of(c.ops[1]): n=max(n,2)
        if c.perml and pw & c.r: n=max(n,2)
        if c.rdlane and pw & c.r: n=max(n,1)
        if p.dot:
            if c.dot and c.op==p.op:
                ab = regs_of(c.ops[1])|regs_of(c.ops[2])
                if pw & ab: n=max(n,3)
            elif (c.valu or c.vmem or c.ds) and pw & (c.r|c.w): n=max(n,3)
        ps=S(p.w)
        if ps:
            if c.valu and ps & c.r: n=max(n,4 if c.op.startswith('v_readlane') else 2)
            if c.vmem and ps & c.r: n=max(n,5)
            if (c.salu or c.op.startswith('s_c')) and ps & c.r and not c.op.startswith('s_cbranch'): n=max(n,1)
    if p.mfma:
        big = '32x32' in p.op
        if c.mfma:
            if p.w & (c.A|c.B): n=max(n,12 if big else 8)
            if p.w & c.C and not (p.w==c.C and p.op==c.op): n=max(n,10 if big else 6)
            if p.w & c.w and not (p.w & c.C): n=max(n,10 if big else 6)
        elif (c.valu or c.vmem or c.ds) and p.w & (c.r|c.w): n=max(n,12 if big else 8)
        if c.valu and p.C & c.w: n=max(n,7 if big else 3)
    if p.salu and ('s',124) in p.w and (c.ds and 'addtid' in c.op): n=max(n,1)
    if p.vmem and '_store' in p.op and ('x4' in p.op or 'x3' in p.op):
        if p.sdata & c.w: n=max(n,2 if c.valu else 1)
    return n

class Asm:
    def __init__(self):
        self.items=[]
    def __call__(self, text):
        for line in text.strip().split('\n'):
            line=line.strip()
            if not line: continue
            if line.startswith(';') or line.startswith('.') or line.endswith(':'):
                self.items.append(line)
            else:
                self.items.append(Ins(line))
    def label(self,l): self.items.append(l+':')
    def raw(self,t): self.items.append(t)
    def render(self):
        out=[]; hist=[]
        nn=0
        for it in self.items:
            if isinstance(it,str):
                out.append(it if (it.endswith(':') or it.startswith('.')) else '    '+it)
                continue
            d=0; req=0
            for p in reversed(hist):
                k=need(p,it)
                if k-d>req: req=k-d
                d+=p.states()
                if d>=20: break
            if req>0:
                nop=Ins('s_nop %d'%(req-1)); hist.append(nop); out.append('    '+nop.text+'    ; hazard'); nn+=1
            hist.append(it); out.append('    '+it.text)
            if it.op in ('s_branch','s_endpgm'): hist=[]
            if len(hist)>40: hist=hist[-40:]
        self.nnops=nn
        return '\n'.join(out)+'\n'
```

```python
import sys, struct
import numpy as np
from asmlib import Asm

NAME='recurrent_scan__ssm_conv_s4__moe_arch_mod__prompt'
STAMP = '--stamp' in sys.argv
OUT = [a for a in sys.argv[1:] if not a.startswith('--')]
OUT = OUT[0] if OUT else 'cdna_kernels/%s.s'%NAME

WS_STATS=4096; WS_INBOX=65536; WS_STAMP=1<<20
TAGC=0x9E3779B8
SPIN=100000
SROW=2080
SB=0
UB=33280; USTR=4608
PD=51712
KB=64000; KSTR=1664; KN=0; KF=1088
FL=70656
XS=70720
YB=87104
LDS=119872
A_SP=0; A_TP=512; A_XN=1024; A_PP=3072; A_PPS=272; A_MS=8192

LOG2E=1.4426950408889634
def fbits(x): return struct.unpack('<I',struct.pack('<f',x))[0]

def rne_bf16_int(l):
    u=np.array([l],dtype=np.float32).view(np.uint32)[0]
    u=(int(u)+0x7fff+((int(u)>>16)&1))>>16
    return int(np.array([u<<16],dtype=np.uint32).view(np.float32)[0])
def idx_of_lhat(h):
    if h<256: return h
    if h<512: return 256+(h-256)//2
    if h<=1024: return 384+(h-512)//4
    raise ValueError
def nidx(l):
    if l<0: return l
    if l>1028: return None
    return idx_of_lhat(rne_bf16_int(l))
H = [0,1,2,3,4,5,6,7,128,129,130,131,132,133,134,135, 256,258,260,262,384,386,388,390,512,516,640,644,768,772,896,900] + [1024+128*k for k in range(9)]

def sel_for(e_lo,e_hi,base_hw):
    s=0
    for k,e in enumerate((e_lo,e_hi)):
        if e is None: b=(0x0c,0x0c)
        else:
            hw=e-base_hw; assert 0<=hw<4,(e,base_hw)
            b=(2*hw,2*hw+1)
        s|=b[0]<<(16*k); s|=b[1]<<(16*k+8)
    return s
def ents(c,lane):
    b=lane&15; g=lane>>4; L=16*c+b-8*g
    return [None if nidx(L-j) is None else nidx(L-j)+16 for j in range(8)]

def build_table():
    T=np.zeros((64,44),dtype=np.uint32)
    for lane in range(64):
        b=lane&15; g=lane>>4
        def j0(c):
            e=ents(c,lane); dw0=e[7]//2
            sels=[sel_for(e[2*k],e[2*k+1],2*(dw0+3-k)) for k in range(4)]
            assert len(set(sels))==1
            return dw0,sels[0]
        d,s=j0(1)
        for c in range(1,16,2): assert j0(c)==(d+8*(c-1),s)
        T[lane,0]=KB+KN+4*d; T[lane,12]=s
        def s2(c):
            e=ents(c,lane); dw0=e[7]//2
            a=[sel_for(e[0],e[1],2*(dw0+1)),sel_for(e[2],e[3],2*(dw0+1))]
            bb=[sel_for(e[4],e[5],2*dw0),sel_for(e[6],e[7],2*dw0)]
            assert a==bb
            return dw0,tuple(a)
        d,s=s2(19)
        for c in range(19,32,2): assert s2(c)==(d+4*(c-19),s)
        T[lane,1]=KB+KN+4*d; T[lane,13:15]=s
        def s4(c):
            e=ents(c,lane); ee=[x for x in e if x is not None]
            dw0=(min(ee)//2) if ee else 0
            return dw0,tuple(sel_for(e[2*k],e[2*k+1],2*dw0) for k in range(4))
        d,s=s4(35)
        for c in range(35,64,2): assert s4(c)==(d+2*(c-35),s)
        T[lane,2]=KB+KN+4*d; T[lane,15:19]=s
        e=ents(17,lane)
        for k in range(4):
            dw=e[2*k+1]//2
            T[lane,3+k]=KB+KN+4*dw; T[lane,19+k]=sel_for(e[2*k],e[2*k+1],2*dw)
        e=ents(33,lane)
        for h in range(2):
            dw=e[4*h+3]//2
            T[lane,7+h]=KB+KN+4*dw
            T[lane,23+2*h]=sel_for(e[4*h],e[4*h+1],2*dw); T[lane,24+2*h]=sel_for(e[4*h+2],e[4*h+3],2*dw)
        d,s=s4(65)
        T[lane,9]=KB+KN+4*d; T[lane,27:31]=s
        T[lane,10]=KB+KF+4*(64+b-4*g-3-48)
        m=b
        na=lambda lh: KB+KN+2*(idx_of_lhat(lh)+16)
        T[lane,11]=na(H[4*g]+8*m)
        for i in range(4): assert na(H[4*g+i]+8*m)==T[lane,11]+2*i
        T[lane,31]=na(H[16+4*g]+8*m); T[lane,32]=na(H[16+4*g+2]+8*m)
        assert na(H[16+4*g+1]+8*m)==T[lane,31]+2 and na(H[16+4*g+3]+8*m)==T[lane,32]+2
        fa=lambda e8: KB+KF+64+2*(e8-1)
        T[lane,34]=fa(16*4*g+m)
        T[lane,33]=na(1024) if lane==0 else T[lane,34]
        T[lane,35]=0
        for hw,o in ((3,36),(4,40)):
            for i in range(4):
                v=0
                for hh in range(2):
                    k=8*g+2*i+hh
                    if abs(k-b-8)<=hw: v|=0x3f80<<(16*hh)
                T[lane,o+i]=v
    return T
ADDR_ENTRIES=list(range(0,12))+[31,32,33,34]

a=Asm()
nst=[0]
def stamp(i):
    if STAMP: a('s_memrealtime s[%d:%d]'%(80+2*i,81+2*i))
def stamp_out(n):
    if not STAMP: return
    a('s_waitcnt lgkmcnt(0)')
    a('s_mov_b64 exec, 1')
    a('s_lshl_b32 s7, s2, 9')
    a('s_lshl_b32 s43, s3, 6')
    a('s_add_u32 s7, s7, s43')
    a('s_add_u32 s7, s7, %d'%WS_STAMP)
    a('v_mov_b32 v1, s7')
    for i in range(n):
        a('v_mov_b32 v2, s%d'%(80+2*i))
        a('global_store_dword v1, v2, s[40:41] offset:%d'%(4*i))
        a('s_nop 0')

def vr(b,n=1): return 'v%d'%b if n==1 else 'v[%d:%d]'%(b,b+n-1)
DPP=' row_mask:0xf bank_mask:0xf'

a('''
s_cmp_ge_u32 s2, 256
s_cbranch_scc1 L_end
s_load_dwordx16 s[8:23], s[0:1], 0
s_load_dwordx16 s[24:39], s[0:1], 64
s_load_dwordx2 s[40:41], s[0:1], 128
''')
stamp(0)
a('''
v_lshrrev_b32 v2, 6, v0
v_and_b32 v1, 63, v0
s_and_b32 s6, s2, 7
s_lshr_b32 s7, s2, 3
v_readfirstlane_b32 s3, v2
s_and_b32 s5, s7, 15
s_lshl_b32 s4, s6, 4
s_add_u32 s4, s4, s5
s_cmp_ge_u32 s7, 16
s_cbranch_scc1 L_conv
''')

X=8; WR=16; SM=24; WFp=32; WDp=48; RAW=64; RAWD=96
a('''
; ---- aux workgroup: LN stats + router score, then the routed FFN ----
v_lshrrev_b32 v2, 5, v0
v_and_b32 v3, 31, v0
v_lshlrev_b32 v3, 4, v3
v_lshl_add_u32 v2, v2, 10, v3
s_lshl_b32 s7, s4, 14
v_add_u32 v2, s7, v2
s_waitcnt lgkmcnt(0)
global_load_dwordx4 v[8:11], v2, s[8:9]
global_load_dwordx4 v[12:15], v2, s[8:9] offset:512
global_load_dwordx4 v[16:19], v3, s[28:29]
global_load_dwordx4 v[20:23], v3, s[28:29] offset:512
s_load_dword s42, s[40:41], 0
s_mov_b32 s44, s30
s_mov_b32 s45, s31
s_mov_b32 s46, 1835008
s_mov_b32 s47, 0x20000
s_mov_b32 s48, s32
s_mov_b32 s49, s33
s_mov_b32 s50, 1835008
s_mov_b32 s51, 0x20000
s_mul_i32 s43, s6, 14
s_add_u32 s43, s43, s5            ; jj
s_and_b32 s7, s43, 1
s_lshl_b32 s7, s7, 5
s_and_b32 s71, s43, 2
s_lshl_b32 s71, s71, 1
s_or_b32 s71, s71, s7
''')
for q in range(4):
    s_,jh=q>>1,q&1
    a('s_xor_b32 s7, s71, %d'%(32*s_+4*jh))
    a('s_mul_i32 s%d, s7, 3584'%(52+q))
a('''
v_lshrrev_b32 v4, 4, v0           ; 4w+g
v_and_b32 v5, 3, v4               ; g
v_lshrrev_b32 v4, 2, v4           ; w
v_lshlrev_b32 v6, 3, v5
v_lshl_add_u32 v6, v4, 6, v6      ; 64w+8g
v_mul_u32_u24 v6, 3584, v6
v_and_b32 v7, 15, v0
s_lshl_b32 s7, s43, 5
v_lshl_add_u32 v6, v7, 1, v6
v_add_u32 v28, s7, v6
v_add_u32 v29, 7168, v28          ; (jl 2,3)
s_lshl_b32 s7, s43, 14
v_lshlrev_b32 v6, 12, v5
v_lshl_add_u32 v6, v4, 7, v6
v_lshl_add_u32 v6, v7, 1, v6
v_add_u32 v30, s7, v6
s_mov_b32 s72, 0x3f803f80
v_mov_b32 v24, 0
v_mov_b32 v25, 0
v_mov_b32 v26, 0
v_mov_b32 v27, 0
s_barrier
s_cmp_ge_u32 s5, 14
s_cbranch_scc1 L_aux_nomoe
''')
def wq(q):
    s_,jh=q>>1,q&1
    for mat in range(2):
        for jl in range(4):
            dst=RAW+mat*16+s_*8+jh*4+jl
            a('buffer_load_ushort v%d, v%d, s[%d:%d], s%d offen offset:%d'%(dst,28+(jl>>1),44+4*mat,47+4*mat,52+q,3584*(jl&1)))
wq(0)
a('''
s_waitcnt vmcnt(8)
s_branch L_aux_stats
L_aux_nomoe:
; these workgroups pull the code and the constant table into their L2
s_getpc_b64 s[56:57]
L_pc0:
s_sub_u32 s56, s56, L_pc0-%s_kernel
s_subb_u32 s57, s57, 0
v_lshlrev_b32 v4, 7, v0
v_min_u32 v4, L_code_end-%s_kernel-4, v4
global_load_dword v64, v4, s[56:57]
s_waitcnt vmcnt(1)
L_aux_stats:
'''%(NAME,NAME))
stamp(1)
for i in range(8):
    a('v_dot2c_f32_bf16 v24, s72, v%d'%(X+i))
    a('v_dot2c_f32_bf16 v25, v%d, v%d'%(X+i,X+i))
    a('v_dot2c_f32_bf16 v26, v%d, v%d'%(X+i,WR+i))
    a('v_dot2c_f32_bf16 v27, s72, v%d'%(WR+i))
a('v_and_b32 v2, 0x1f0, v0')
for sh in (8,4,2,1):
    for i in range(4):
        a('v_add_f32_dpp v%d, v%d, v%d row_ror:%d'%(24+i,24+i,24+i,sh)+DPP)
a('''
s_mov_b32 exec_lo, 0x00010001
s_mov_b32 exec_hi, 0x00010001
ds_write_b128 v2, v[24:27] offset:%d
s_mov_b64 exec, -1
s_waitcnt lgkmcnt(0)
s_or_b32 s42, s42, 1
s_add_u32 s42, s42, 0x%x          ; launch tag
s_barrier
s_cmp_lg_u32 s3, 0
s_cbranch_scc1 L_aux_pub_done
v_and_b32 v2, 15, v1
v_lshlrev_b32 v2, 5, v2
ds_read_b128 v[8:11], v2 offset:%d
ds_read_b128 v[12:15], v2 offset:%d
s_lshl_b32 s7, s4, 7
s_add_u32 s7, s7, %d
v_lshl_add_u32 v3, v1, 3, s7
s_mov_b32 s73, 0x3b000000         ; 1/512
s_waitcnt lgkmcnt(0)
v_add_f32 v8, v8, v12
v_add_f32 v9, v9, v13
v_add_f32 v10, v10, v14
v_add_f32 v11, v11, v15
v_mul_f32 v8, s73, v8             ; mean
v_mul_f32 v9, s73, v9
v_fma_f32 v9, -v8, v8, v9
v_max_f32 v9, 0, v9               ; var
v_cvt_pk_bf16_f32 v9, v9, v9
v_and_b32 v9, 0xffff0000, v9
v_add_f32 v9, 0x%x, v9
v_cvt_pk_bf16_f32 v9, v9, v9
v_and_b32 v9, 0xffff0000, v9
v_sqrt_f32 v9, v9
v_cvt_pk_bf16_f32 v16, v8, v9     ; mean | sd<<16
v_and_b32 v9, 0xffff0000, v16
v_lshlrev_b32 v8, 16, v16
v_rcp_f32 v9, v9
v_fma_f32 v10, -v8, v11, v10
v_mov_b32_dpp v17, v16 quad_perm:[1,1,3,3] row_mask:0xf bank_mask:0xf
v_mul_f32 v10, v10, v9            ; router score
v_cvt_pk_bf16_f32 v10, v10, v10
v_ashrrev_i32 v11, 31, v10
v_or_b32 v11, 0x80008000, v11
v_xor_b32 v10, v10, v11           ; sortable key in both halves
v_mov_b32 v19, s42
s_mov_b32 s73, 0xffff
v_mov_b32_dpp v11, v10 quad_perm:[1,1,3,3] row_mask:0xf bank_mask:0xf
v_bfi_b32 v18, s73, v10, v11
s_mov_b64 exec, 0x5555
global_store_dwordx4 v3, v[16:19], s[40:41] sc1
s_mov_b64 exec, -1
L_aux_pub_done:
'''%(A_SP,TAGC,A_SP,A_SP+16,WS_STATS,fbits(1e-5)))
stamp(2)
a('''
s_barrier
v_lshlrev_b32 v2, 4, v0
v_add_u32 v2, %d, v2
v_add_u32 v3, 8192, v2
s_mov_b32 s70, 0
s_cmp_lt_u32 s5, 14
s_cbranch_scc1 L_aux_moe
s_cmp_lg_u32 s2, 120
s_cbranch_scc1 L_aux_end
s_branch L_aux_poll
L_aux_moe:
'''%WS_STATS)
for q in (1,2,3): wq(q)
for tp in range(4):
    for i in range(4):
        a('global_load_ushort v%d, v30, s[34:35] offset:%d'%(RAWD+tp*4+i,i*1024+tp*32))
G0=8; G1=12
a('''
L_aux_poll:
global_load_dwordx4 v[8:11], v2, s[40:41] sc1
global_load_dwordx4 v[12:15], v3, s[40:41] sc1
s_waitcnt vmcnt(0)
v_cmp_ne_u32 vcc, s42, v11
v_cmp_ne_u32 s[74:75], s42, v15
s_or_b64 vcc, vcc, s[74:75]
s_cbranch_scc0 L_aux_polled
s_add_u32 s70, s70, 1
s_cmp_lt_u32 s70, %d
s_sleep 2
s_cbranch_scc1 L_aux_poll
L_aux_polled:
'''%SPIN)
stamp(3)
a('''
s_cmp_lt_u32 s5, 14
s_cbranch_scc1 L_aux_top2
; epoch update: every aux workgroup has read the old epoch word by now
s_barrier
s_cmp_lg_u32 s3, 0
s_cbranch_scc1 L_aux_end
s_mov_b64 exec, 1
v_mov_b32 v2, 0
v_mov_b32 v3, s42
global_store_dword v2, v3, s[38:39] sc0 sc1
s_waitcnt vmcnt(0)
global_store_dword v2, v3, s[40:41] sc0 sc1
s_branch L_aux_end
L_aux_top2:
v_lshlrev_b32 v4, 1, v0
v_sub_u32 v5, 2047, v4
v_sub_u32 v6, 2046, v4
v_sub_u32 v7, 1023, v4
v_sub_u32 v4, 1022, v4
s_mov_b32 s73, 0xffff0000
v_lshl_or_b32 v5, v10, 16, v5
v_and_or_b32 v6, v10, s73, v6
v_lshl_or_b32 v7, v14, 16, v7
v_and_or_b32 v4, v14, s73, v4
v_lshlrev_b32 v2, 3, v0
v_max_u32 v16, v5, v6
v_min_u32 v17, v5, v6
v_max_u32 v18, v7, v4
v_min_u32 v19, v7, v4
ds_write_b64 v2, v[8:9] offset:%d
ds_write_b64 v2, v[12:13] offset:%d
v_min_u32 v5, v16, v18
v_max_u32 v6, v17, v19
v_max_u32 v16, v16, v18
v_max_u32 v17, v5, v6
v_lshrrev_b32 v2, 1, v0
v_and_b32 v2, 0xf8, v2
'''%(A_MS,A_MS+4096))
def top2_steps():
    for sh in (8,4,2,1):
        a('v_min_u32_dpp v5, v16, v16 row_ror:%d'%sh+DPP)
        a('v_max_u32_dpp v6, v17, v17 row_ror:%d'%sh+DPP)
        a('v_max_u32_dpp v16, v16, v16 row_ror:%d'%sh+DPP)
        a('v_max_u32 v17, v5, v6')
top2_steps()
a('''
s_mov_b32 exec_lo, 0x00010001
s_mov_b32 exec_hi, 0x00010001
ds_write_b64 v2, v[16:17] offset:%d
s_mov_b64 exec, -1
v_and_b32 v7, 15, v0
v_lshlrev_b32 v2, 4, v7
s_waitcnt lgkmcnt(0)
s_barrier
ds_read_b128 v[16:19], v2 offset:%d
'''%(A_TP,A_TP))
for i in range(16):
    a('v_lshl_or_b32 v%d, v%d, 16, v%d'%(WFp+i,RAW+2*i+1,RAW+2*i))
a('''
s_waitcnt lgkmcnt(0)
v_min_u32 v5, v16, v18
v_max_u32 v6, v17, v19
v_max_u32 v16, v16, v18
v_max_u32 v17, v5, v6
''')
top2_steps()
a('''
s_mov_b32 s74, 0
s_mov_b32 s75, -1
v_cndmask_b32 v4, v16, v17, s[74:75]      ; lanes>=32 take the second token
v_and_b32 v4, 0x7ff, v4
v_sub_u32 v4, 2047, v4                    ; row
v_and_b32 v5, 31, v0
v_lshlrev_b32 v5, 2, v5
s_lshl_b32 s7, s3, 7
v_lshl_add_u32 v6, v4, 10, v5
v_add_u32 v6, s7, v6
global_load_dword v8, v6, s[8:9]
v_lshlrev_b32 v4, 2, v4
ds_read_b32 v9, v4 offset:%d
'''%A_MS)
stamp(4)
for i in range(8):
    a('v_lshl_or_b32 v%d, v%d, 16, v%d'%(WDp+i,RAWD+2*i+1,RAWD+2*i))
GR=64
a('''
s_mov_b32 s74, 0xaaaaaaaa
s_mov_b32 s75, 0xaaaaaaaa
v_cndmask_b32 v10, v16, v17, s[74:75]     ; odd lanes: second token
v_and_b32 v11, 0x7ff, v10
v_sub_u32 v66, 2047, v11                  ; idx of this lane's token
v_ashrrev_i32 v11, 31, v10
v_not_b32 v11, v11
v_or_b32 v11, 0x80000000, v11
v_xor_b32 v10, v10, v11
v_and_b32 v10, 0xffff0000, v10            ; router score of this lane's token
v_mul_f32 v10, 0x%x, v10
v_exp_f32 v10, v10
v_mov_b32 v67, s42
v_mov_b32 v70, v66
v_add_f32 v10, 1.0, v10
v_rcp_f32 v10, v10                        ; sigmoid(score)
v_mov_b32 v71, s42
v_mov_b32 v74, v66
v_mov_b32 v75, s42
v_mov_b32 v78, v66
v_mov_b32 v79, s42
; LDS addresses
s_lshl_b32 s71, s71, 1
v_xor_b32 v5, s71, v5
v_lshrrev_b32 v11, 5, v0                  ; 2w + tok
v_lshl_add_u32 v5, v11, 7, v5             ; xn write address
v_and_b32 v11, 1, v0
v_bfe_u32 v12, v0, 4, 2                   ; g
s_lshl_b32 s7, s3, 8
v_lshlrev_b32 v13, 7, v11
v_lshl_add_u32 v13, v12, 4, v13
v_add_u32 v13, s7, v13                    ; xn fragment read address
v_lshl_add_u32 v14, v11, 2, v12
v_lshlrev_b32 v14, 5, v14                 ; (tok*4+g)*32
s_mul_i32 s7, s3, %d
v_add_u32 v15, s7, v14                    ; partial write address
v_bfe_u32 v18, v0, 1, 3
v_mul_u32_u24 v18, %d, v18
v_add_u32 v14, v18, v14                   ; partial read address
s_lshl_b32 s7, s3, 16
s_lshl_b32 s73, s43, 5
s_add_u32 s7, s7, s73
s_add_u32 s7, s7, %d
v_lshlrev_b32 v18, 12, v12
v_lshl_add_u32 v18, v11, 4, v18
v_add_u32 v56, s7, v18                    ; inbox address, tile 0
v_add_u32 v57, 16384, v56
v_add_u32 v58, 32768, v56
v_add_u32 v59, 49152, v56
s_waitcnt lgkmcnt(0)
v_and_b32 v16, 0xffff0000, v9
v_rcp_f32 v16, v16
v_lshlrev_b32 v17, 16, v9
s_waitcnt vmcnt(0)
'''%(fbits(-LOG2E),A_PPS,A_PPS,WS_INBOX))
stamp(5)
a('''
v_lshlrev_b32 v18, 16, v8
v_and_b32 v19, 0xffff0000, v8
v_sub_f32 v18, v18, v17
v_sub_f32 v19, v19, v17
v_cvt_pk_bf16_f32 v8, v18, v19
v_lshlrev_b32 v18, 16, v8
v_and_b32 v19, 0xffff0000, v8
v_mul_f32 v18, v18, v16
v_mul_f32 v19, v19, v16
v_cvt_pk_bf16_f32 v8, v18, v19
ds_write_b32 v5, v8 offset:%d
ds_read_b128 v[16:19], v13 offset:%d
ds_read_b128 v[20:23], v13 offset:%d
s_waitcnt lgkmcnt(1)
v_mfma_f32_16x16x32_bf16 v[80:83], v[32:35], v[16:19], 0
v_mfma_f32_16x16x32_bf16 v[84:87], v[40:43], v[16:19], 0
s_waitcnt lgkmcnt(0)
v_mfma_f32_16x16x32_bf16 v[80:83], v[36:39], v[20:23], v[80:83]
v_mfma_f32_16x16x32_bf16 v[84:87], v[44:47], v[20:23], v[84:87]
s_mov_b32 exec_lo, 0x00030003
s_mov_b32 exec_hi, 0x00030003
ds_write_b128 v15, v[80:83] offset:%d
ds_write_b128 v15, v[84:87] offset:%d
s_mov_b64 exec, -1
s_waitcnt lgkmcnt(0)
s_barrier
ds_read_b128 v[80:83], v14 offset:%d
ds_read_b128 v[84:87], v14 offset:%d
s_waitcnt lgkmcnt(0)
'''%(A_XN,A_XN,A_XN+64,A_PP,A_PP+16,A_PP,A_PP+16))
for sh in (8,4,2):
    for i in range(8):
        a('v_add_f32_dpp v%d, v%d, v%d row_ror:%d'%(80+i,80+i,80+i,sh)+DPP)
for i in range(4): a('v_mul_f32 v%d, 0x%x, v%d'%(16+i,fbits(-LOG2E),80+i))
for i in range(4): a('v_exp_f32 v%d, v%d'%(16+i,16+i))
for i in range(4): a('v_mul_f32 v%d, v%d, v10'%(84+i,84+i))
for i in range(4): a('v_add_f32 v%d, 1.0, v%d'%(16+i,16+i))
for i in range(4): a('v_rcp_f32 v%d, v%d'%(16+i,16+i))
for i in range(4): a('v_mul_f32 v%d, v%d, v%d'%(80+i,80+i,84+i))
for i in range(4): a('v_mul_f32 v%d, v%d, v%d'%(80+i,80+i,16+i))
a('''
v_cvt_pk_bf16_f32 v16, v80, v81
v_cvt_pk_bf16_f32 v17, v82, v83
''')
for tp in range(4):
    a('v_mfma_f32_16x16x16_bf16 v[%d:%d], v[%d:%d], v[16:17], 0'%(96+4*tp,99+4*tp,WDp+2*tp,WDp+2*tp+1))
a('''
s_mov_b32 exec_lo, 0x00030003
s_mov_b32 exec_hi, 0x00030003
''')
for tp in range(4):
    a('v_cvt_pk_bf16_f32 v%d, v%d, v%d'%(GR+4*tp,96+4*tp,97+4*tp))
    a('v_cvt_pk_bf16_f32 v%d, v%d, v%d'%(GR+4*tp+1,98+4*tp,99+4*tp))
    a('global_store_dwordx4 v%d, v[%d:%d], s[40:41] sc1'%(56+tp,GR+4*tp,GR+4*tp+3))
stamp(6)
a('L_aux_end:')
if STAMP:
    a('s_waitcnt vmcnt(0)')
    stamp(7)
    stamp_out(8)
a('s_endpgm')

CT=220
BOX=196
XR=200
a('''
L_conv:
; ---- conv workgroup: 4 channels, all 2048 rows ----
s_and_b32 s43, s3, 3
s_lshr_b32 s7, s3, 2
s_lshl_b32 s71, s4, 10
s_lshl_b32 s73, s43, 8
s_add_u32 s71, s71, s73
s_lshl_b32 s7, s7, 7
s_add_u32 s71, s71, s7
v_lshl_add_u32 v2, v1, 1, s71
v_mov_b32 v10, 0
v_mov_b32 v11, 0
v_mov_b32 v12, 0
v_mov_b32 v13, 0
v_mov_b32 v14, 0
v_mov_b32 v15, 0
s_lshl_b32 s7, s4, 3
s_waitcnt lgkmcnt(0)
global_load_short_d16_hi v10, v2, s[10:11]
global_load_short_d16_hi v11, v2, s[12:13]
global_load_short_d16_hi v12, v2, s[14:15]
global_load_short_d16_hi v13, v2, s[16:17]
global_load_short_d16_hi v14, v2, s[18:19]
global_load_short_d16_hi v15, v2, s[20:21]
s_load_dwordx2 s[58:59], s[22:23], s7
s_load_dwordx2 s[60:61], s[24:25], s7
s_load_dword s42, s[40:41], 0
v_mov_b32 v4, 0
v_mov_b32 v5, 0
v_mov_b32 v6, 0
v_mov_b32 v7, 0
v_and_b32 v3, 255, v0
v_lshl_add_u32 v216, v3, 11, s7
v_add_u32 v217, 0x80000, v216
v_add_u32 v218, 0x100000, v216
v_add_u32 v219, 0x180000, v216
s_cmp_ge_u32 s3, 4
s_cbranch_scc1 L_row_pre
s_lshl_b32 s73, s5, 17
s_lshl_b32 s74, s3, 15
s_add_u32 s73, s73, s74
s_add_u32 s73, s73, s7
v_and_b32 v3, 31, v1
v_lshl_add_u32 v3, v3, 10, s73
global_load_dword v8, v3, s[8:9]
s_getpc_b64 s[56:57]
L_pc1:
s_add_u32 s56, s56, L_table-L_pc1
s_addc_u32 s57, s57, 0
v_lshlrev_b32 v3, 4, v1
v_add_u32 v9, 4096, v3
v_add_u32 v16, 8192, v3
''')
for q in range(11):
    dst = CT+4*q if q<9 else BOX+4*(q-9)
    a('global_load_dwordx4 v[%d:%d], v%d, s[56:57] offset:%d'%(dst,dst+3,(3,9,16)[q>>2],1024*(q&3)))
a('''
s_mul_i32 s73, s43, %d
v_lshl_add_u32 v3, v1, 3, s73
ds_write_b64 v3, v[4:5] offset:%d          ; zero rows before t=0
s_mul_i32 s74, s43, %d
v_lshl_add_u32 v3, v1, 2, s74
s_mov_b64 exec, 0xffff
ds_write_b32 v3, v4 offset:%d              ; zero taps l<0 (and a little more)
ds_write_b32 v3, v4 offset:%d              ; zero far taps below 1032
v_lshlrev_b32 v3, 2, v1
ds_write_b32 v3, v4 offset:%d              ; flags
s_mov_b64 exec, -1
s_waitcnt lgkmcnt(0)
s_barrier
s_waitcnt vmcnt(12)
s_branch L_kgen
L_row_pre:
'''%(USTR,UB,KSTR,KB+KN-0,KB+KF,0))
for p in range(4):
    for e in range(2):
        a('global_load_dwordx2 v[%d:%d], v%d, s[8:9] offset:%d'%(XR+4*p+2*e,XR+4*p+2*e+1,216+p,1024*e))
a('''
s_setprio 2
s_waitcnt lgkmcnt(0)
s_barrier
s_waitcnt vmcnt(8)
L_kgen:
''')
stamp(1)
W1=20; W8=22; W128=24; W2=26; W4=28; E=30; E2=32; T0=34; T1=36; PK=38
YF=48; XF=(64,80); DK=96
a('''
s_or_b32 s42, s42, 1
s_add_u32 s42, s42, 0x%x
s_lshl_b32 s7, s43, 4
s_lshr_b64 s[58:59], s[58:59], s7
s_lshl_b32 s58, s58, 16
v_mov_b32 v16, 0x%x
v_mul_f32 v17, s58, v16
v_exp_f32 v17, v17
s_lshl_b32 m0, s3, 8
v_and_b32 v2, 15, v1
v_mul_u32_u24 v2, %d, v2
v_cvt_pk_bf16_f32 v17, v17, v17
v_and_b32 v17, 0xffff0000, v17            ; dt
v_mul_f32 v18, v17, v16
v_mul_f32 v19, 0.15915494, v17
v_mul_f32 v10, v10, v18                   ; dt*A_re*log2(e)
v_mul_f32 v11, v11, v19                   ; dt*A_im/(2 pi)
v_and_b32 v3, 48, v1
v_add3_u32 v2, v2, v3, m0                 ; fragment read address
'''%(TAGC,fbits(LOG2E),SROW))
def cmul(d,x,y):
    a('v_pk_mul_f32 %s, %s, %s op_sel:[0,0] op_sel_hi:[1,0]'%(vr(d,2),vr(x,2),vr(y,2)))
    a('v_pk_fma_f32 %s, %s, %s, %s op_sel:[1,1,0] op_sel_hi:[0,1,1] neg_lo:[0,1,0]'%(vr(d,2),vr(x,2),vr(y,2),vr(d,2)))
def anchor(d,s,conj=False):
    if s!=1:
        a('v_mul_f32 v40, 0x%x, v10'%fbits(float(s)))
        a('v_mul_f32 v41, 0x%x, v11'%fbits(float(s)))
        a('v_exp_f32 v40, v40'); a('v_fract_f32 v41, v41')
    else:
        a('v_exp_f32 v40, v10'); a('v_fract_f32 v41, v11')
    a('v_cos_f32 v%d, v41'%d)
    a('v_sin_f32 v%d, v41'%(d+1))
    a('v_pk_mul_f32 %s, %s, v[40:41] op_sel:[0,0] op_sel_hi:[1,0]%s'%(vr(d,2),vr(d,2),' neg_hi:[1,0]' if conj else ''))
pkt=[0]
ldsops=[0]
def put(row,src):
    t=PK+(pkt[0]&1); pkt[0]+=1
    a('v_cvt_pk_bf16_f32 v%d, v%d, v%d'%(t,src,src+1))
    a('ds_write_addtid_b32 v%d offset:%d'%(t,SB+row*SROW)); ldsops[0]+=1
def rdfrags(dst):
    for s in range(4):
        a('ds_read_b128 %s, v2 offset:%d'%(vr(dst+4*s,4),SB+64*s)); ldsops[0]+=1
    return ldsops[0]
def mm(tile,xf,mark):
    a('s_waitcnt lgkmcnt(%d)'%min(15,ldsops[0]-mark))
    for s in range(4):
        a('v_mfma_f32_16x16x32_bf16 %s, %s, %s, %s'%(vr(DK+4*tile,4),vr(xf+4*s,4),vr(YF+4*s,4),'0' if s==0 else vr(DK+4*tile,4)))
anchor(W8,8,conj=True)
a('v_mov_b32 v42, 0x3f80')
a('ds_write_addtid_b32 v42 offset:%d'%SB); ldsops[0]+=1
put(1,W8)
cur=W8
for m in range(2,16):
    nxt=T0 if cur!=T0 else T1
    cmul(nxt,cur,W8); put(m,nxt); cur=nxt
rdfrags(YF)
anchor(W1,1); anchor(W128,128)
a('v_pk_mul_f32 v[12:13], v[12:13], v[16:17] op_sel:[0,1] op_sel_hi:[1,1]')
cmul(E,14,12)
Ec=[E]
def nextE():
    n=E2 if Ec[0]==E else E
    cmul(n,Ec[0],W128); Ec[0]=n
def chain(row,n,w):
    put(row,Ec[0]); cur=Ec[0]
    for i in range(1,n):
        nxt=T0 if cur!=T0 else T1
        cmul(nxt,cur,w); put(row+i,nxt); cur=nxt
chain(0,8,W1); nextE(); chain(8,8,W1)
mk0=rdfrags(XF[0])
cmul(W2,W1,W1); cmul(W4,W2,W2)
nextE(); chain(0,4,W2); nextE(); chain(4,4,W2)
mm(0,XF[0],mk0)
for k in range(4):
    nextE(); chain(8+2*k,2,W4)
mk1=rdfrags(XF[1])
for k in range(9):
    nextE(); put(k,Ec[0])
    if k==4: mm(1,XF[1],mk1)
mk2=rdfrags(XF[0])
a('''
s_mul_i32 s7, s43, 3072
v_lshl_add_u32 v3, v1, 4, s7
s_lshl_b32 s7, s43, 2
s_add_u32 s7, s7, %d
v_mov_b32 v4, s7
'''%FL)
mm(2,XF[0],mk2)
stamp(2)
a('''
s_cmp_ge_u32 s3, 4
s_cbranch_scc1 L_row
''')
UFB=8; NUF=10; ACC=48; AF=64; FK=204; WF=220; D7=236; D9=240
a('; ---- matrix wave: finish K, build Toeplitz fragments ----')
a('s_waitcnt vmcnt(0)')
a('s_mul_i32 s74, s43, %d'%KSTR)
for e in ADDR_ENTRIES: a('v_add_u32 v%d, s74, v%d'%(CT+e,CT+e))
a('''
s_mov_b32 s70, 0
L_pd_wait:
ds_read_b32 v5, v4
ds_read_b128 v[48:51], v3 offset:%d
ds_read_b128 v[52:55], v3 offset:%d
ds_read_b128 v[56:59], v3 offset:%d
s_waitcnt lgkmcnt(0)
v_cmp_eq_u32 vcc, 0, v5
s_cbranch_vccz L_pd_ok
s_add_u32 s70, s70, 1
s_cmp_lt_u32 s70, %d
s_cbranch_scc1 L_pd_wait
L_pd_ok:
'''%(PD,PD+1024,PD+2048,SPIN*10))
for i in range(6): a('v_pk_add_f32 %s, %s, %s'%(vr(48+2*i,2),vr(48+2*i,2),vr(DK+2*i,2)))
for i in range(6): a('v_cvt_pk_bf16_f32 v%d, v%d, v%d'%(8+i,48+2*i,49+2*i))
a('''
ds_write_b64 v%d, v[8:9]
ds_write_b32 v%d, v10
ds_write_b32 v%d, v11
ds_write_b16 v%d, v12
ds_write_b16_d16_hi v%d, v12 offset:32
ds_write_b16 v%d, v13 offset:64
ds_write_b16_d16_hi v%d, v13 offset:96
'''%(CT+11,CT+31,CT+32,CT+33,CT+34,CT+34,CT+34))
def af(c): return AF+4*((c-1)//2)
jobs=[]
for c in range(1,66,2):
    if c<16:
        o=8*(c-1)
        rd=[('r2',0,CT+0,o,o+1),('r2',2,CT+0,o+2,o+3),('r1',4,CT+0,4*(o+4))]
        pm=[(4-k,3-k,CT+12) for k in range(4)]
    elif c==17:
        rd=[('r2',2*k,CT+3+k,0,1) for k in range(4)]
        pm=[(2*k+1,2*k,CT+19+k) for k in range(4)]
    elif c<32:
        o=4*(c-19)
        rd=[('r2',0,CT+1,o,o+1),('r1',2,CT+1,4*(o+2))]
        pm=[(2,1,CT+13),(2,1,CT+14),(1,0,CT+13),(1,0,CT+14)]
    elif c==33:
        rd=[('r2',2*h,CT+7+h,0,1) for h in range(2)]
        pm=[(1,0,CT+23),(1,0,CT+24),(3,2,CT+25),(3,2,CT+26)]
    elif c<64:
        o=2*(c-35)
        rd=[('r2',0,CT+2,o,o+1)]
        pm=[(1,0,CT+15+k) for k in range(4)]
    else:
        rd=[('r2',0,CT+9,0,1)]
        pm=[(1,0,CT+27+k) for k in range(4)]
    jobs.append((c,rd,pm))
RING=[16,24,32,40,48,56]
cnt=0; marks=[]
def issue(j):
    global cnt
    c,rd,pm=jobs[j]; t=RING[j%len(RING)]
    for r in rd:
        if r[0]=='r2': a('ds_read2_b32 %s, v%d offset0:%d offset1:%d'%(vr(t+r[1],2),r[2],r[3],r[4]))
        else: a('ds_read_b32 v%d, v%d offset:%d'%(t+r[1],r[2],r[3]))
        cnt+=1
    marks.append(cnt)
AHEAD=4
for j in range(AHEAD): issue(j)
for j in range(len(jobs)):
    if j+AHEAD<len(jobs): issue(j+AHEAD)
    elif j+AHEAD==len(jobs):
        for dl in range(4):
            a('ds_read2_b32 %s, v%d offset0:%d offset1:%d'%(vr(FK+4*dl,2),CT+10,16*dl+3,16*dl+2))
            a('ds_read2_b32 %s, v%d offset0:%d offset1:%d'%(vr(FK+4*dl+2,2),CT+10,16*dl+1,16*dl)); cnt+=2
    a('s_waitcnt lgkmcnt(%d)'%min(15,cnt-marks[j]))
    c,rd,pm=jobs[j]; t=RING[j%len(RING)]
    for k,(hi,lo,sel) in enumerate(pm):
        a('v_perm_b32 v%d, v%d, v%d, v%d'%(af(c)+k,t+hi,t+lo,sel))
a('''
v_and_b32 v2, 15, v1
v_and_b32 v3, 48, v1
s_mul_i32 s7, s43, %d
v_lshl_add_u32 v4, v2, 5, v3
v_add_u32 v4, s7, v4                      ; u fragment base
s_lshl_b32 s7, s43, 13
s_add_u32 s7, s7, %d
v_lshl_add_u32 v5, v2, 6, v3
v_add_u32 v5, s7, v5                      ; y write base
s_lshl_b32 s7, s4, 12
s_add_u32 s7, s7, %d
v_lshl_add_u32 v6, v1, 4, s7              ; inbox address
s_waitcnt lgkmcnt(0)
'''%(USTR,YB,WS_INBOX))
stamp(3)
prog=[]
for P in range(4):
    t0,t1=2*P,2*P+1
    for rho in range(8):
        r=2*rho+1
        lo=max(0,t0-3)
        if rho==0 and P>=2: prog.append(('m',t0,af(65),(t0-4,r,0)))
        for ip in range(lo,t1+1):
            for t in (t0,t1):
                j=t-ip
                if 0<=j<=3: prog.append(('m',t,af(16*j+r),(ip,r,0)))
                elif j==4 and rho==0 and P>=2: prog.append(('m',t,af(65),(ip,r,0)))
            if P==1 and rho==0:
                prog.append(('box',ip,7,(ip,1,0)))
                prog.append(('box',ip,9,(ip,1,1)))
                if ip>0: prog.append(('wpack',ip-1))
        if P==1 and rho==1: prog.append(('wpack',3))
        if P>=2 and rho==3:
            for t in (t0,t1):
                for ip in range(0,t-3): prog.append(('far',t,ip,t-ip-4))
    prog.append(('end',P))
uses=[]
seen={}
for n,o in enumerate(prog):
    if o[0]=='end': seen={}
    if o[0] in ('m','box'):
        k=o[3]
        if k in seen: uses[seen[k]][2]=n
        else: seen[k]=len(uses); uses.append([k,n,n])
opfrag={}
for ui,(k,f,l) in enumerate(uses):
    for n in range(f,l+1):
        if prog[n][0] in ('m','box') and prog[n][3]==k: opfrag[n]=ui
avail_bar=lambda k: min(k[0]>>1,2)
cnt=0; mark={}; slot={}; free=list(range(NUF)); nxt=0; bars=0; started=set()
def try_issue(n):
    global cnt,nxt
    while nxt<len(uses) and free and avail_bar(uses[nxt][0])<=bars:
        k=uses[nxt][0]; s=free.pop(0); slot[nxt]=s
        off=UB+512+512*k[0]-32*k[1]-16*k[2]
        a('ds_read_b128 %s, v4 offset:%d'%(vr(UFB+4*s,4),off)); cnt+=1; mark[nxt]=cnt; nxt+=1
def accreg(t): return ACC+4*(t&3)
a('s_barrier')
waited=-1
for n,o in enumerate(prog):
    try_issue(n)
    if o[0] in ('m','box'):
        ui=opfrag[n]
        assert ui in slot, (n,o)
        if ui>waited:
            a('s_waitcnt lgkmcnt(%d)'%min(15,cnt-mark[ui])); waited=ui
        f=vr(UFB+4*slot[ui],4)
        if o[0]=='m':
            t=o[1]; c='0' if t not in started else vr(accreg(t),4); started.add(t)
            a('v_mfma_f32_16x16x32_bf16 %s, %s, %s, %s'%(vr(accreg(t),4),vr(o[2],4),f,c))
        else:
            d=(D7 if o[2]==7 else D9)+8*(o[1]&1)
            a('v_mfma_f32_16x16x32_bf16 %s, %s, %s, 0'%(vr(d,4),f,vr(BOX+(0 if o[2]==7 else 4),4)))
        if uses[ui][2]==n: free.append(slot[ui])
    elif o[0]=='wpack':
        ip=o[1]
        for i in range(4): a('v_cvt_pk_bf16_f32 v%d, v%d, v%d'%(WF+4*ip+i,D7+8*(ip&1)+i,D9+8*(ip&1)+i))
    elif o[0]=='far':
        t=o[1]
        a('v_mfma_f32_16x16x32_bf16 %s, %s, %s, %s'%(vr(accreg(t),4),vr(WF+4*o[2],4),vr(FK+4*o[3],4),vr(accreg(t),4)))
    else:
        P=o[1]
        for t in (2*P,2*P+1):
            a('ds_write_b128 v5, %s offset:%d'%(vr(accreg(t),4),1024*t)); cnt+=1
        a('s_waitcnt lgkmcnt(0)'); waited=nxt-1
        a('s_barrier'); bars+=1
        stamp(4+P)
IB=8
a('''
s_cmp_lg_u32 s3, 0
s_cbranch_scc1 L_mat_tail
s_mov_b32 s70, 0
v_mov_b32 v20, 0
v_mov_b32 v21, 0
L_inbox_poll:
v_mov_b32 v23, s42
global_load_dwordx4 v[8:11], v6, s[40:41] sc1
global_load_dwordx4 v[12:15], v6, s[40:41] offset:1024 sc1
global_load_dwordx4 v[16:19], v6, s[40:41] offset:2048 sc1
s_mov_b32 exec_hi, 0
global_load_dwordx4 v[20:23], v6, s[40:41] offset:3072 sc1
s_mov_b64 exec, -1
s_waitcnt vmcnt(0)
v_cmp_ne_u32 vcc, s42, v11
v_cmp_ne_u32 s[74:75], s42, v15
v_cmp_ne_u32 s[76:77], s42, v19
v_cmp_ne_u32 s[78:79], s42, v23
s_or_b64 vcc, vcc, s[74:75]
s_or_b64 s[76:77], s[76:77], s[78:79]
s_or_b64 vcc, vcc, s[76:77]
s_cbranch_scc0 L_inbox_ok
v_mov_b32 v24, 0
global_load_dword v25, v24, s[38:39] sc0 sc1
s_waitcnt vmcnt(0)
v_readfirstlane_b32 s7, v25
s_cmp_lg_u32 s7, 0
s_cselect_b32 s42, s7, s42
s_add_u32 s70, s70, 1
s_cmp_lt_u32 s70, %d
s_cbranch_scc1 L_inbox_poll
L_inbox_ok:
v_and_b32 v10, 0x7ff, v10                 ; routed row of this lane's token
v_lshlrev_b32 v24, 3, v10
v_add_u32 v24, %d, v24
ds_read_b64 v[40:41], v24                 ; x
v_lshlrev_b32 v24, 1, v10
v_lshlrev_b32 v25, 2, v10
v_add_u32 v25, %d, v25
'''%(SPIN,XS,YB))
for ch in range(4):
    a('ds_read_u16 v%d, v24 offset:%d'%(44+ch,UB+512+USTR*ch))
    a('ds_read_b32 v%d, v25 offset:%d'%(48+ch,8192*ch))
for q in range(4):
    for h in range(2):
        src=8+4*q+h
        if q==0:
            a('v_lshlrev_b32 v%d, 16, v%d'%(28+2*h,src)); a('v_and_b32 v%d, 0xffff0000, v%d'%(29+2*h,src))
        else:
            a('v_lshlrev_b32 v32, 16, v%d'%src); a('v_and_b32 v33, 0xffff0000, v%d'%src)
            a('v_pk_add_f32 %s, %s, v[32:33]'%(vr(28+2*h,2),vr(28+2*h,2)))
for sh in (8,4,2):
    for i in range(4): a('v_add_f32_dpp v%d, v%d, v%d row_ror:%d'%(28+i,28+i,28+i,sh)+DPP)
for sw in ('16','32'):
    for i in range(4): a('v_mov_b32 v%d, v%d'%(32+i,28+i))
    for i in range(4): a('v_permlane%s_swap_b32 v%d, v%d'%(sw,28+i,32+i))
    for i in range(4): a('v_add_f32 v%d, v%d, v%d'%(28+i,28+i,32+i))
a('''
s_lshl_b32 s62, s60, 16
s_and_b32 s63, s60, 0xffff0000
s_lshl_b32 s64, s61, 16
s_and_b32 s65, s61, 0xffff0000
s_lshl_b32 s7, s4, 3
v_lshl_add_u32 v24, v10, 10, s7
s_waitcnt lgkmcnt(0)
v_lshlrev_b32 v36, 16, v40
v_and_b32 v37, 0xffff0000, v40
v_lshlrev_b32 v38, 16, v41
v_and_b32 v39, 0xffff0000, v41
''')
for i in range(4): a('v_lshlrev_b32 v%d, 16, v%d'%(44+i,44+i))
for i in range(4): a('v_add_f32 v%d, v%d, v%d'%(28+i,28+i,44+i))
for i in range(4): a('v_mul_f32 v%d, 0x%x, v%d'%(32+i,fbits(-LOG2E),28+i))
for i in range(4): a('v_exp_f32 v%d, v%d'%(32+i,32+i))
for i in range(4): a('v_fma_f32 v%d, v%d, s%d, v%d'%(48+i,44+i,62+i,48+i))
for i in range(4): a('v_add_f32 v%d, 1.0, v%d'%(32+i,32+i))
for i in range(4): a('v_rcp_f32 v%d, v%d'%(32+i,32+i))
for i in range(4): a('v_mul_f32 v%d, v%d, v%d'%(28+i,28+i,48+i))
for i in range(4): a('v_fma_f32 v%d, v%d, v%d, v%d'%(36+i,28+i,32+i,36+i))
a('''
v_cvt_pk_bf16_f32 v36, v36, v37
v_cvt_pk_bf16_f32 v37, v38, v39
s_barrier
s_mov_b64 exec, 3
global_store_dwordx2 v24, v[36:37], s[36:37]
''')
if STAMP:
    stamp(8); a('s_waitcnt vmcnt(0)'); stamp(9); stamp_out(10)
a('''
s_endpgm
L_mat_tail:
''')
if STAMP:
    stamp(8); stamp(9); stamp_out(10)
a('s_endpgm')

XFp=64; G=96; XN=112; GG=144; ST=176; YT=8; OT=24
a('''
L_row:
; ---- row wave: hand the partial K over, normalise, gate, write out ----
v_mov_b32 v5, 1
s_nop 4
ds_write_b128 v3, v[96:99] offset:%d
ds_write_b128 v3, v[100:103] offset:%d
ds_write_b128 v3, v[104:107] offset:%d
ds_write_b32 v4, v5
s_lshl_b32 s7, s43, 8
s_add_u32 m0, s7, %d
v_subrev_u32 v2, 256, v0
v_lshlrev_b32 v3, 4, v2
v_add_u32 v4, %d, v3                      ; stats granule address
v_add_u32 v5, 8192, v4
v_add_u32 v3, %d, v3                      ; x stash address
v_lshlrev_b32 v6, 3, v2
v_add_u32 v6, %d, v6                      ; y read address
s_lshl_b32 s62, s60, 16
s_and_b32 s63, s60, 0xffff0000
s_lshl_b32 s64, s61, 16
s_and_b32 s65, s61, 0xffff0000
s_mov_b32 s66, 0x%x
s_mov_b32 s67, 0x%x
s_mov_b32 s70, 0
s_waitcnt vmcnt(0)
'''%(PD,PD+1024,PD+2048,UB+512,WS_STATS+4096,XS,YB,fbits(-LOG2E),fbits(-LOG2E)))
def polls():
    a('''
global_load_dwordx4 v[96:99], v4, s[40:41] offset:-4096 sc1
global_load_dwordx4 v[100:103], v4, s[40:41] sc1
global_load_dwordx4 v[104:107], v5, s[40:41] offset:-4096 sc1
global_load_dwordx4 v[108:111], v5, s[40:41] sc1
''')
polls()
for p in range(4):
    a('ds_write_b128 v3, %s offset:%d'%(vr(XR+4*p,4),4096*p))
    for e in range(2):
        for hh in range(2):
            src=XR+4*p+2*e+hh
            a('v_lshlrev_b32 v%d, 16, v%d'%(XFp+8*p+4*hh+e,src))
            a('v_and_b32 v%d, 0xffff0000, v%d'%(XFp+8*p+4*hh+2+e,src))
stamp(3)
a('''
L_row_check:
s_waitcnt vmcnt(0)
v_cmp_ne_u32 vcc, s42, v99
v_cmp_ne_u32 s[74:75], s42, v103
v_cmp_ne_u32 s[76:77], s42, v107
v_cmp_ne_u32 s[78:79], s42, v111
s_or_b64 vcc, vcc, s[74:75]
s_or_b64 s[76:77], s[76:77], s[78:79]
s_or_b64 vcc, vcc, s[76:77]
s_cbranch_scc0 L_row_ok
s_add_u32 s70, s70, 1
s_cmp_ge_u32 s70, %d
s_cbranch_scc1 L_row_ok
s_and_b32 s7, s70, 15
s_cbranch_scc1 L_row_repoll
v_mov_b32 v8, 0
global_load_dword v9, v8, s[38:39] sc0 sc1
s_waitcnt vmcnt(0)
v_readfirstlane_b32 s7, v9
s_cmp_lg_u32 s7, 0
s_cselect_b32 s42, s7, s42
L_row_repoll:
s_sleep 2
'''%SPIN)
polls()
a('''
s_branch L_row_check
L_row_ok:
''')
stamp(4)
def norm(p):
    g=G+4*p
    a('v_and_b32 v%d, 0xffff0000, v%d'%(ST,g)); a('v_and_b32 v%d, 0xffff0000, v%d'%(ST+1,g+1))
    a('v_rcp_f32 v%d, v%d'%(ST,ST)); a('v_rcp_f32 v%d, v%d'%(ST+1,ST+1))
    a('v_lshlrev_b32 v%d, 16, v%d'%(ST+2,g)); a('v_lshlrev_b32 v%d, 16, v%d'%(ST+3,g+1))
    a('v_pk_mul_f32 %s, %s, %s neg_lo:[1,0] neg_hi:[1,0]'%(vr(ST+2,2),vr(ST+2,2),vr(ST,2)))
    for ch in range(4):
        a('v_pk_fma_f32 %s, %s, %s, %s'%(vr(XN+8*p+2*ch,2),vr(XFp+8*p+2*ch,2),vr(ST,2),vr(ST+2,2)))
    for ch in range(4):
        a('v_cvt_pk_bf16_f32 v%d, v%d, v%d'%(ST+4+ch,XN+8*p+2*ch,XN+8*p+2*ch+1))
        a('ds_write_addtid_b32 v%d offset:%d'%(ST+4+ch,USTR*ch+1024*p))
def gc(p):
    for ch in range(4):
        a('v_pk_mul_f32 %s, %s, s[66:67]'%(vr(GG+8*p+2*ch,2),vr(XN+8*p+2*ch,2)))
    for i in range(8): a('v_exp_f32 v%d, v%d'%(GG+8*p+i,GG+8*p+i))
    for ch in range(4):
        a('v_pk_add_f32 %s, %s, 1.0 op_sel_hi:[1,0]'%(vr(GG+8*p+2*ch,2),vr(GG+8*p+2*ch,2)))
    for i in range(8): a('v_rcp_f32 v%d, v%d'%(GG+8*p+i,GG+8*p+i))
    for ch in range(4):
        a('v_pk_mul_f32 %s, %s, %s'%(vr(GG+8*p+2*ch,2),vr(GG+8*p+2*ch,2),vr(XN+8*p+2*ch,2)))
    for ch in range(4):
        sp=62+(ch&2); o=ch&1
        a('v_pk_mul_f32 %s, %s, s[%d:%d] op_sel:[0,%d] op_sel_hi:[1,%d]'%(vr(XN+8*p+2*ch,2),vr(XN+8*p+2*ch,2),sp,sp+1,o,o))
    for ch in range(4):
        a('v_pk_fma_f32 %s, %s, %s, %s'%(vr(XFp+8*p+2*ch,2),vr(XN+8*p+2*ch,2),vr(GG+8*p+2*ch,2),vr(XFp+8*p+2*ch,2)))
def final(p):
    for ch in range(4): a('ds_read_b64 %s, v6 offset:%d'%(vr(YT+2*ch,2),8192*ch+2048*p))
    for ch in range(4):
        a('s_waitcnt lgkmcnt(%d)'%(3-ch))
        a('v_pk_fma_f32 %s, %s, %s, %s'%(vr(YT+2*ch,2),vr(YT+2*ch,2),vr(GG+8*p+2*ch,2),vr(XFp+8*p+2*ch,2)))
    o=OT+4*p
    for e in range(2):
        a('v_cvt_pk_bf16_f32 v%d, v%d, v%d'%(o+2*e,YT+e,YT+2+e))
        a('v_cvt_pk_bf16_f32 v%d, v%d, v%d'%(o+2*e+1,YT+4+e,YT+6+e))
        a('global_store_dwordx2 v%d, %s, s[36:37] offset:%d'%(216+p,vr(o+2*e,2),1024*e))
def bar(): a('s_waitcnt lgkmcnt(0)\ns_barrier')
norm(0); bar()
norm(1); gc(0); bar()
stamp(5)
final(0); norm(2); norm(3); gc(1); bar()
stamp(6)
final(1); gc(2); gc(3); bar()
final(2); bar()
stamp(7)
final(3); a('s_barrier')
if STAMP:
    stamp(8); a('s_waitcnt vmcnt(0)'); stamp(9); stamp_out(10)
a('''
L_end:
s_endpgm
''')

body=a.render()
body=body.replace('v_lshlrev_b32 v3, 2, v1\n    ds_write_b32 v3, v4 offset:0              ; flags',
                  'v_lshlrev_b32 v3, 2, v1\n    v_add_u32 v3, %d, v3\n    ds_write_b32 v3, v4              ; flags'%FL)
assert 'ds_write_b32 v3, v4              ; flags' in body
T=build_table()
tab=['.p2align 7','.type L_table,@object','L_table:']
for q in range(11):
    for lane in range(64):
        tab.append('.long '+', '.join('0x%08x'%v for v in T[lane,4*q:4*q+4]))
tab.append('L_code_end:')
hdr=open('cdna_kernels/%s.s.ref'%NAME).read().split('; Override')[0]
src=hdr+'''; One launch, 256 workgroups of 8 waves (one per CU): 128 "aux" workgroups (LayerNorm statistics,
; router score, routed SwiGLU FFN) and 128 "conv" workgroups (S4D kernel generation + causal
; convolution on the matrix cores + gating/residual).  Generated by gen/gen.py.
; @launch grid=(256,1,1) block=(512,1,1) lds=%d
.amdgcn_target "amdgcn-amd-amdhsa--gfx950"
.text
.globl %s_kernel
.p2align 8
.type %s_kernel,@function
%s_kernel:
'''%(LDS,NAME,NAME,NAME)+body+'\n'.join(tab)+'''
.section .rodata,"a"
.p2align 6
.amdhsa_kernel %s_kernel
  .amdhsa_next_free_vgpr 256
  .amdhsa_next_free_sgpr 102
  .amdhsa_accum_offset 256
  .amdhsa_group_segment_fixed_size 0
  .amdhsa_kernarg_size 136
  .amdhsa_user_sgpr_count 2
  .amdhsa_user_sgpr_kernarg_segment_ptr 1
  .amdhsa_system_sgpr_workgroup_id_x 1
.end_amdhsa_kernel
'''%NAME
open(OUT,'w').write(src)
print('wrote',OUT,'nops',a.nnops,'mfma ops',sum(1 for o in prog if o[0] in('m','box','far')),'frag loads',len(uses))
```

```python
import sys, struct
import numpy as np
from asmlib import Asm

NAME='recurrent_scan__ssm_conv_s4__moe_arch_mod__prompt'
DBGST = '--dbgstamp' in sys.argv
STAMP = '--stamp' in sys.argv or DBGST
OUT = [a for a in sys.argv[1:] if not a.startswith('--')]
OUT = OUT[0] if OUT else 'cdna_kernels/%s.s'%NAME

WS_STATS=4096; WS_INBOX=65536; WS_STAMP=1<<20
TAGC=0x9E3779B8
SPIN=100000
SROW=2080
SB=0
UB=33280; USTR=4608
PD=51712
KB=64000; KSTR=1664; KN=0; KF=1088
FL=70656
XS=70720
YB=87104
LDS=119872
A_SP=0; A_TP=512; A_XN=1024; A_PP=3072; A_PPS=272; A_MS=8192

LOG2E=1.4426950408889634
def fbits(x): return struct.unpack('<I',struct.pack('<f',x))[0]

def rne_bf16_int(l):
    u=np.array([l],dtype=np.float32).view(np.uint32)[0]
    u=(int(u)+0x7fff+((int(u)>>16)&1))>>16
    return int(np.array([u<<16],dtype=np.uint32).view(np.float32)[0])
def idx_of_lhat(h):
    if h<256: return h
    if h<512: return 256+(h-256)//2
    if h<=1024: return 384+(h-512)//4
    raise ValueError
def nidx(l):
    if l<0: return l
    if l>1028: return None
    return idx_of_lhat(rne_bf16_int(l))
H = [0,1,2,3,4,5,6,7,128,129,130,131,132,133,134,135, 256,258,260,262,384,386,388,390,512,516,640,644,768,772,896,900] + [1024+128*k for k in range(9)]

def sel_for(e_lo,e_hi,base_hw):
    s=0
    for k,e in enumerate((e_lo,e_hi)):
        if e is None: b=(0x0c,0x0c)
        else:
            hw=e-base_hw; assert 0<=hw<4,(e,base_hw)
            b=(2*hw,2*hw+1)
        s|=b[0]<<(16*k); s|=b[1]<<(16*k+8)
    return s
def ents(c,lane):
    b=lane&15; g=lane>>4; L=16*c+b-8*g
    return [None if nidx(L-j) is None else nidx(L-j)+16 for j in range(8)]

def build_table():
    T=np.zeros((64,44),dtype=np.uint32)
    for lane in range(64):
        b=lane&15; g=lane>>4
        def j0(c):
            e=ents(c,lane); dw0=e[7]//2
            sels=[sel_for(e[2*k],e[2*k+1],2*(dw0+3-k)) for k in range(4)]
            assert len(set(sels))==1
            return dw0,sels[0]
        d,s=j0(1)
        for c in range(1,16,2): assert j0(c)==(d+8*(c-1),s)
        T[lane,0]=KB+KN+4*d; T[lane,12]=s
        def s2(c):
            e=ents(c,lane); dw0=e[7]//2
            a=[sel_for(e[0],e[1],2*(dw0+1)),sel_for(e[2],e[3],2*(dw0+1))]
            bb=[sel_for(e[4],e[5],2*dw0),sel_for(e[6],e[7],2*dw0)]
            assert a==bb
            return dw0,tuple(a)
        d,s=s2(19)
        for c in range(19,32,2): assert s2(c)==(d+4*(c-19),s)
        T[lane,1]=KB+KN+4*d; T[lane,13:15]=s
        def s4(c):
            e=ents(c,lane); ee=[x for x in e if x is not None]
            dw0=(min(ee)//2) if ee else 0
            return dw0,tuple(sel_for(e[2*k],e[2*k+1],2*dw0) for k in range(4))
        d,s=s4(35)
        for c in range(35,64,2): assert s4(c)==(d+2*(c-35),s)
        T[lane,2]=KB+KN+4*d; T[lane,15:19]=s
        e=ents(17,lane)
        for k in range(4):
            dw=e[2*k+1]//2
            T[lane,3+k]=KB+KN+4*dw; T[lane,19+k]=sel_for(e[2*k],e[2*k+1],2*dw)
        e=ents(33,lane)
        for h in range(2):
            dw=e[4*h+3]//2
            T[lane,7+h]=KB+KN+4*dw
            T[lane,23+2*h]=sel_for(e[4*h],e[4*h+1],2*dw); T[lane,24+2*h]=sel_for(e[4*h+2],e[4*h+3],2*dw)
        d,s=s4(65)
        T[lane,9]=KB+KN+4*d; T[lane,27:31]=s
        T[lane,10]=KB+KF+4*(64+b-4*g-3-48)
        m=b
        na=lambda lh: KB+KN+2*(idx_of_lhat(lh)+16)
        T[lane,11]=na(H[4*g]+8*m)
        for i in range(4): assert na(H[4*g+i]+8*m)==T[lane,11]+2*i
        T[lane,31]=na(H[16+4*g]+8*m); T[lane,32]=na(H[16+4*g+2]+8*m)
        assert na(H[16+4*g+1]+8*m)==T[lane,31]+2 and na(H[16+4*g+3]+8*m)==T[lane,32]+2
        fa=lambda e8: KB+KF+64+2*(e8-1)
        T[lane,34]=fa(16*4*g+m)
        T[lane,33]=na(1024) if lane==0 else T[lane,34]
        T[lane,35]=0
        for hw,o in ((3,36),(4,40)):
            for i in range(4):
                v=0
                for hh in range(2):
                    k=8*g+2*i+hh
                    if abs(k-b-8)<=hw: v|=0x3f80<<(16*hh)
                T[lane,o+i]=v
    return T
ADDR_ENTRIES=list(range(0,12))+[31,32,33,34]

a=Asm()
nst=[0]
def stamp(i):
    if STAMP: a('s_memrealtime s[%d:%d]'%(80+2*i,81+2*i))
def stamp_out(n,slots=None):
    if not STAMP: return
    a('s_memtime s[100:101]')
    a('s_waitcnt lgkmcnt(0)')
    a('s_mov_b64 exec, 1')
    if DBGST:
        a('v_mov_b32 v1, 0')
        a('s_not_b32 s7, s80')
        a('v_mov_b32 v2, s7')
        a('global_atomic_umax v1, v2, s[38:39] offset:4')
        for st,sl in [(0,2)]+slots:
            a('v_mov_b32 v2, s%d'%(80+2*st))
            a('global_atomic_umax v1, v2, s[38:39] offset:%d'%(4*sl))
        return
    a('s_sub_u32 s100, s100, s68')
    a('s_lshl_b32 s7, s2, 9')
    a('s_lshl_b32 s43, s3, 6')
    a('s_add_u32 s7, s7, s43')
    a('s_add_u32 s7, s7, %d'%WS_STAMP)
    a('v_mov_b32 v1, s7')
    for i in range(n):
        a('v_mov_b32 v2, s%d'%(80+2*i))
        a('global_store_dword v1, v2, s[40:41] offset:%d'%(4*i))
        a('s_nop 0')
    a('v_mov_b32 v2, s100')
    a('global_store_dword v1, v2, s[40:41] offset:60')

def vr(b,n=1): return 'v%d'%b if n==1 else 'v[%d:%d]'%(b,b+n-1)
DPP=' row_mask:0xf bank_mask:0xf'

a('''
s_cmp_ge_u32 s2, 256
s_cbranch_scc1 L_end
s_load_dwordx16 s[8:23], s[0:1], 0
s_load_dwordx16 s[24:39], s[0:1], 64
s_load_dwordx2 s[40:41], s[0:1], 128
''')
stamp(0)
if STAMP: a('s_memtime s[68:69]')
a('''
v_lshrrev_b32 v2, 6, v0
v_and_b32 v1, 63, v0
s_and_b32 s6, s2, 7
s_lshr_b32 s7, s2, 3
v_readfirstlane_b32 s3, v2
s_and_b32 s5, s7, 15
s_lshl_b32 s4, s6, 4
s_add_u32 s4, s4, s5
s_cmp_ge_u32 s7, 16
s_cbranch_scc1 L_conv
''')

X=8; WR=16; SM=24; WFp=32; WDp=48; RAW=64; RAWD=96
a('''
; ---- aux workgroup: LN stats + router score, then the routed FFN ----
v_lshrrev_b32 v2, 5, v0
v_and_b32 v3, 31, v0
v_lshlrev_b32 v3, 4, v3
v_lshl_add_u32 v2, v2, 10, v3
s_lshl_b32 s7, s4, 14
v_add_u32 v2, s7, v2
s_waitcnt lgkmcnt(0)
global_load_dwordx4 v[8:11], v2, s[8:9]
global_load_dwordx4 v[12:15], v2, s[8:9] offset:512
global_load_dwordx4 v[16:19], v3, s[28:29]
global_load_dwordx4 v[20:23], v3, s[28:29] offset:512
s_load_dword s42, s[40:41], 0
s_mov_b32 s44, s30
s_mov_b32 s45, s31
s_mov_b32 s46, 1835008
s_mov_b32 s47, 0x20000
s_mov_b32 s48, s32
s_mov_b32 s49, s33
s_mov_b32 s50, 1835008
s_mov_b32 s51, 0x20000
s_mul_i32 s43, s6, 14
s_add_u32 s43, s43, s5            ; jj
s_and_b32 s7, s43, 1
s_lshl_b32 s7, s7, 5
s_and_b32 s71, s43, 2
s_lshl_b32 s71, s71, 1
s_or_b32 s71, s71, s7
''')
for q in range(4):
    s_,jh=q>>1,q&1
    a('s_xor_b32 s7, s71, %d'%(32*s_+4*jh))
    a('s_mul_i32 s%d, s7, 3584'%(52+q))
a('''
v_lshrrev_b32 v4, 4, v0           ; 4w+g
v_and_b32 v5, 3, v4               ; g
v_lshrrev_b32 v4, 2, v4           ; w
v_lshlrev_b32 v6, 3, v5
v_lshl_add_u32 v6, v4, 6, v6      ; 64w+8g
v_mul_u32_u24 v6, 3584, v6
v_and_b32 v7, 15, v0
s_lshl_b32 s7, s43, 5
v_lshl_add_u32 v6, v7, 1, v6
v_add_u32 v28, s7, v6
v_add_u32 v29, 7168, v28          ; (jl 2,3)
s_lshl_b32 s7, s43, 14
v_lshlrev_b32 v6, 12, v5
v_lshl_add_u32 v6, v4, 7, v6
v_lshl_add_u32 v6, v7, 1, v6
v_add_u32 v30, s7, v6
s_mov_b32 s72, 0x3f803f80
v_mov_b32 v24, 0
v_mov_b32 v25, 0
v_mov_b32 v26, 0
v_mov_b32 v27, 0
s_barrier
s_cmp_ge_u32 s5, 14
s_cbranch_scc1 L_aux_nomoe
''')
def wq(q):
    s_,jh=q>>1,q&1
    for mat in range(2):
        for jl in range(4):
            dst=RAW+mat*16+s_*8+jh*4+jl
            a('buffer_load_ushort v%d, v%d, s[%d:%d], s%d offen offset:%d'%(dst,28+(jl>>1),44+4*mat,47+4*mat,52+q,3584*(jl&1)))
wq(0)
a('''
s_waitcnt vmcnt(8)
s_branch L_aux_stats
L_aux_nomoe:
; these workgroups pull the code and the constant table into their L2
s_getpc_b64 s[56:57]
L_pc0:
s_sub_u32 s56, s56, L_pc0-%s_kernel
s_subb_u32 s57, s57, 0
v_lshlrev_b32 v4, 7, v0
v_min_u32 v4, L_code_end-%s_kernel-4, v4
global_load_dword v64, v4, s[56:57]
s_waitcnt vmcnt(1)
L_aux_stats:
'''%(NAME,NAME))
stamp(1)
for i in range(8):
    a('v_dot2c_f32_bf16 v24, s72, v%d'%(X+i))
    a('v_dot2c_f32_bf16 v25, v%d, v%d'%(X+i,X+i))
    a('v_dot2c_f32_bf16 v26, v%d, v%d'%(X+i,WR+i))
    a('v_dot2c_f32_bf16 v27, s72, v%d'%(WR+i))
a('v_and_b32 v2, 0x1f0, v0')
for sh in (8,4,2,1):
    for i in range(4):
        a('v_add_f32_dpp v%d, v%d, v%d row_ror:%d'%(24+i,24+i,24+i,sh)+DPP)
a('''
s_mov_b32 exec_lo, 0x00010001
s_mov_b32 exec_hi, 0x00010001
ds_write_b128 v2, v[24:27] offset:%d
s_mov_b64 exec, -1
s_waitcnt lgkmcnt(0)
s_or_b32 s42, s42, 1
s_add_u32 s42, s42, 0x%x          ; launch tag
s_barrier
s_cmp_lg_u32 s3, 0
s_cbranch_scc1 L_aux_pub_done
v_and_b32 v2, 15, v1
v_lshlrev_b32 v2, 5, v2
ds_read_b128 v[8:11], v2 offset:%d
ds_read_b128 v[12:15], v2 offset:%d
s_lshl_b32 s7, s4, 7
s_add_u32 s7, s7, %d
v_lshl_add_u32 v3, v1, 3, s7
s_mov_b32 s73, 0x3b000000         ; 1/512
s_waitcnt lgkmcnt(0)
v_add_f32 v8, v8, v12
v_add_f32 v9, v9, v13
v_add_f32 v10, v10, v14
v_add_f32 v11, v11, v15
v_mul_f32 v8, s73, v8             ; mean
v_mul_f32 v9, s73, v9
v_fma_f32 v9, -v8, v8, v9
v_max_f32 v9, 0, v9               ; var
v_cvt_pk_bf16_f32 v9, v9, v9
v_and_b32 v9, 0xffff0000, v9
v_add_f32 v9, 0x%x, v9
v_cvt_pk_bf16_f32 v9, v9, v9
v_and_b32 v9, 0xffff0000, v9
v_sqrt_f32 v9, v9
v_cvt_pk_bf16_f32 v16, v8, v9     ; mean | sd<<16
v_and_b32 v9, 0xffff0000, v16
v_lshlrev_b32 v8, 16, v16
v_rcp_f32 v9, v9
v_fma_f32 v10, -v8, v11, v10
v_mov_b32_dpp v17, v16 quad_perm:[1,1,3,3] row_mask:0xf bank_mask:0xf
v_mul_f32 v10, v10, v9            ; router score
v_cvt_pk_bf16_f32 v10, v10, v10
v_ashrrev_i32 v11, 31, v10
v_or_b32 v11, 0x80008000, v11
v_xor_b32 v10, v10, v11           ; sortable key in both halves
v_mov_b32 v19, s42
s_mov_b32 s73, 0xffff
v_mov_b32_dpp v11, v10 quad_perm:[1,1,3,3] row_mask:0xf bank_mask:0xf
v_bfi_b32 v18, s73, v10, v11
s_mov_b64 exec, 0x5555
global_store_dwordx4 v3, v[16:19], s[40:41] sc1
s_mov_b64 exec, -1
L_aux_pub_done:
'''%(A_SP,TAGC,A_SP,A_SP+16,WS_STATS,fbits(1e-5)))
stamp(2)
a('''
s_barrier
v_lshlrev_b32 v2, 4, v0
v_add_u32 v2, %d, v2
v_add_u32 v3, 8192, v2
s_mov_b32 s70, 0
s_cmp_lt_u32 s5, 14
s_cbranch_scc1 L_aux_moe
s_cmp_lg_u32 s2, 120
s_cbranch_scc1 L_aux_end
s_branch L_aux_poll
L_aux_moe:
'''%WS_STATS)
for q in (1,2,3): wq(q)
for tp in range(4):
    for i in range(4):
        a('global_load_ushort v%d, v30, s[34:35] offset:%d'%(RAWD+tp*4+i,i*1024+tp*32))
G0=8; G1=12
a('''
L_aux_poll:
global_load_dwordx4 v[8:11], v2, s[40:41] sc1
global_load_dwordx4 v[12:15], v3, s[40:41] sc1
s_waitcnt vmcnt(0)
v_cmp_ne_u32 vcc, s42, v11
v_cmp_ne_u32 s[74:75], s42, v15
s_or_b64 vcc, vcc, s[74:75]
s_cbranch_scc0 L_aux_polled
s_add_u32 s70, s70, 1
s_cmp_lt_u32 s70, %d
s_sleep 2
s_cbranch_scc1 L_aux_poll
L_aux_polled:
'''%SPIN)
stamp(3)
a('''
s_cmp_lt_u32 s5, 14
s_cbranch_scc1 L_aux_top2
; epoch update: every aux workgroup has read the old epoch word by now
s_barrier
s_cmp_lg_u32 s3, 0
s_cbranch_scc1 L_aux_end
s_mov_b64 exec, 1
v_mov_b32 v2, 0
v_mov_b32 v3, s42
global_store_dword v2, v3, s[38:39] sc0 sc1
s_waitcnt vmcnt(0)
global_store_dword v2, v3, s[40:41] sc0 sc1
s_branch L_aux_end
L_aux_top2:
v_lshlrev_b32 v4, 1, v0
v_sub_u32 v5, 2047, v4
v_sub_u32 v6, 2046, v4
v_sub_u32 v7, 1023, v4
v_sub_u32 v4, 1022, v4
s_mov_b32 s73, 0xffff0000
v_lshl_or_b32 v5, v10, 16, v5
v_and_or_b32 v6, v10, s73, v6
v_lshl_or_b32 v7, v14, 16, v7
v_and_or_b32 v4, v14, s73, v4
v_lshlrev_b32 v2, 3, v0
v_max_u32 v16, v5, v6
v_min_u32 v17, v5, v6
v_max_u32 v18, v7, v4
v_min_u32 v19, v7, v4
ds_write_b64 v2, v[8:9] offset:%d
ds_write_b64 v2, v[12:13] offset:%d
v_min_u32 v5, v16, v18
v_max_u32 v6, v17, v19
v_max_u32 v16, v16, v18
v_max_u32 v17, v5, v6
v_lshrrev_b32 v2, 1, v0
v_and_b32 v2, 0xf8, v2
'''%(A_MS,A_MS+4096))
def top2_steps():
    for sh in (8,4,2,1):
        a('v_min_u32_dpp v5, v16, v16 row_ror:%d'%sh+DPP)
        a('v_max_u32_dpp v6, v17, v17 row_ror:%d'%sh+DPP)
        a('v_max_u32_dpp v16, v16, v16 row_ror:%d'%sh+DPP)
        a('v_max_u32 v17, v5, v6')
top2_steps()
a('''
s_mov_b32 exec_lo, 0x00010001
s_mov_b32 exec_hi, 0x00010001
ds_write_b64 v2, v[16:17] offset:%d
s_mov_b64 exec, -1
v_and_b32 v7, 15, v0
v_lshlrev_b32 v2, 4, v7
s_waitcnt lgkmcnt(0)
s_barrier
ds_read_b128 v[16:19], v2 offset:%d
'''%(A_TP,A_TP))
for i in range(16):
    a('v_lshl_or_b32 v%d, v%d, 16, v%d'%(WFp+i,RAW+2*i+1,RAW+2*i))
a('''
s_waitcnt lgkmcnt(0)
v_min_u32 v5, v16, v18
v_max_u32 v6, v17, v19
v_max_u32 v16, v16, v18
v_max_u32 v17, v5, v6
''')
top2_steps()
a('''
s_mov_b32 s74, 0
s_mov_b32 s75, -1
v_cndmask_b32 v4, v16, v17, s[74:75]      ; lanes>=32 take the second token
v_and_b32 v4, 0x7ff, v4
v_sub_u32 v4, 2047, v4                    ; row
v_and_b32 v5, 31, v0
v_lshlrev_b32 v5, 2, v5
s_lshl_b32 s7, s3, 7
v_lshl_add_u32 v6, v4, 10, v5
v_add_u32 v6, s7, v6
global_load_dword v8, v6, s[8:9]
v_lshlrev_b32 v4, 2, v4
ds_read_b32 v9, v4 offset:%d
'''%A_MS)
stamp(4)
for i in range(8):
    a('v_lshl_or_b32 v%d, v%d, 16, v%d'%(WDp+i,RAWD+2*i+1,RAWD+2*i))
GR=64
a('''
s_mov_b32 s74, 0xaaaaaaaa
s_mov_b32 s75, 0xaaaaaaaa
v_cndmask_b32 v10, v16, v17, s[74:75]     ; odd lanes: second token
v_and_b32 v11, 0x7ff, v10
v_sub_u32 v66, 2047, v11                  ; idx of this lane's token
v_ashrrev_i32 v11, 31, v10
v_not_b32 v11, v11
v_or_b32 v11, 0x80000000, v11
v_xor_b32 v10, v10, v11
v_and_b32 v10, 0xffff0000, v10            ; router score of this lane's token
v_mul_f32 v10, 0x%x, v10
v_exp_f32 v10, v10
v_mov_b32 v67, s42
v_mov_b32 v70, v66
v_add_f32 v10, 1.0, v10
v_rcp_f32 v10, v10                        ; sigmoid(score)
v_mov_b32 v71, s42
v_mov_b32 v74, v66
v_mov_b32 v75, s42
v_mov_b32 v78, v66
v_mov_b32 v79, s42
; LDS addresses
s_lshl_b32 s71, s71, 1
v_xor_b32 v5, s71, v5
v_lshrrev_b32 v11, 5, v0                  ; 2w + tok
v_lshl_add_u32 v5, v11, 7, v5             ; xn write address
v_and_b32 v11, 1, v0
v_bfe_u32 v12, v0, 4, 2                   ; g
s_lshl_b32 s7, s3, 8
v_lshlrev_b32 v13, 7, v11
v_lshl_add_u32 v13, v12, 4, v13
v_add_u32 v13, s7, v13                    ; xn fragment read address
v_lshl_add_u32 v14, v11, 2, v12
v_lshlrev_b32 v14, 5, v14                 ; (tok*4+g)*32
s_mul_i32 s7, s3, %d
v_add_u32 v15, s7, v14                    ; partial write address
v_bfe_u32 v18, v0, 1, 3
v_mul_u32_u24 v18, %d, v18
v_add_u32 v14, v18, v14                   ; partial read address
s_lshl_b32 s7, s3, 16
s_lshl_b32 s73, s43, 5
s_add_u32 s7, s7, s73
s_add_u32 s7, s7, %d
v_lshlrev_b32 v18, 12, v12
v_lshl_add_u32 v18, v11, 4, v18
v_add_u32 v56, s7, v18                    ; inbox address, tile 0
v_add_u32 v57, 16384, v56
v_add_u32 v58, 32768, v56
v_add_u32 v59, 49152, v56
s_waitcnt lgkmcnt(0)
v_and_b32 v16, 0xffff0000, v9
v_rcp_f32 v16, v16
v_lshlrev_b32 v17, 16, v9
s_waitcnt vmcnt(0)
'''%(fbits(-LOG2E),A_PPS,A_PPS,WS_INBOX))
stamp(5)
a('''
v_lshlrev_b32 v18, 16, v8
v_and_b32 v19, 0xffff0000, v8
v_sub_f32 v18, v18, v17
v_sub_f32 v19, v19, v17
v_cvt_pk_bf16_f32 v8, v18, v19
v_lshlrev_b32 v18, 16, v8
v_and_b32 v19, 0xffff0000, v8
v_mul_f32 v18, v18, v16
v_mul_f32 v19, v19, v16
v_cvt_pk_bf16_f32 v8, v18, v19
ds_write_b32 v5, v8 offset:%d
ds_read_b128 v[16:19], v13 offset:%d
ds_read_b128 v[20:23], v13 offset:%d
s_waitcnt lgkmcnt(1)
v_mfma_f32_16x16x32_bf16 v[80:83], v[32:35], v[16:19], 0
v_mfma_f32_16x16x32_bf16 v[84:87], v[40:43], v[16:19], 0
s_waitcnt lgkmcnt(0)
v_mfma_f32_16x16x32_bf16 v[80:83], v[36:39], v[20:23], v[80:83]
v_mfma_f32_16x16x32_bf16 v[84:87], v[44:47], v[20:23], v[84:87]
s_mov_b32 exec_lo, 0x00030003
s_mov_b32 exec_hi, 0x00030003
ds_write_b128 v15, v[80:83] offset:%d
ds_write_b128 v15, v[84:87] offset:%d
s_mov_b64 exec, -1
s_waitcnt lgkmcnt(0)
s_barrier
ds_read_b128 v[80:83], v14 offset:%d
ds_read_b128 v[84:87], v14 offset:%d
s_waitcnt lgkmcnt(0)
'''%(A_XN,A_XN,A_XN+64,A_PP,A_PP+16,A_PP,A_PP+16))
for sh in (8,4,2):
    for i in range(8):
        a('v_add_f32_dpp v%d, v%d, v%d row_ror:%d'%(80+i,80+i,80+i,sh)+DPP)
for i in range(4): a('v_mul_f32 v%d, 0x%x, v%d'%(16+i,fbits(-LOG2E),80+i))
for i in range(4): a('v_exp_f32 v%d, v%d'%(16+i,16+i))
for i in range(4): a('v_mul_f32 v%d, v%d, v10'%(84+i,84+i))
for i in range(4): a('v_add_f32 v%d, 1.0, v%d'%(16+i,16+i))
for i in range(4): a('v_rcp_f32 v%d, v%d'%(16+i,16+i))
for i in range(4): a('v_mul_f32 v%d, v%d, v%d'%(80+i,80+i,84+i))
for i in range(4): a('v_mul_f32 v%d, v%d, v%d'%(80+i,80+i,16+i))
a('''
v_cvt_pk_bf16_f32 v16, v80, v81
v_cvt_pk_bf16_f32 v17, v82, v83
''')
for tp in range(4):
    a('v_mfma_f32_16x16x16_bf16 v[%d:%d], v[%d:%d], v[16:17], 0'%(96+4*tp,99+4*tp,WDp+2*tp,WDp+2*tp+1))
a('''
s_mov_b32 exec_lo, 0x00030003
s_mov_b32 exec_hi, 0x00030003
''')
for tp in range(4):
    a('v_cvt_pk_bf16_f32 v%d, v%d, v%d'%(GR+4*tp,96+4*tp,97+4*tp))
    a('v_cvt_pk_bf16_f32 v%d, v%d, v%d'%(GR+4*tp+1,98+4*tp,99+4*tp))
    a('global_store_dwordx4 v%d, v[%d:%d], s[40:41] sc1'%(56+tp,GR+4*tp,GR+4*tp+3))
stamp(6)
if STAMP:
    a('s_waitcnt vmcnt(0)')
    stamp(7)
    stamp_out(8,[(1,3),(2,4),(3,5),(5,6),(6,7)])
a('L_aux_end:')
a('s_endpgm')

CT=220
BOX=196
XR=200
a('''
L_conv:
; ---- conv workgroup: 4 channels, all 2048 rows ----
s_and_b32 s43, s3, 3
s_lshr_b32 s7, s3, 2
s_lshl_b32 s71, s4, 10
s_lshl_b32 s73, s43, 8
s_add_u32 s71, s71, s73
s_lshl_b32 s7, s7, 7
s_add_u32 s71, s71, s7
v_lshl_add_u32 v2, v1, 1, s71
v_mov_b32 v10, 0
v_mov_b32 v11, 0
v_mov_b32 v12, 0
v_mov_b32 v13, 0
v_mov_b32 v14, 0
v_mov_b32 v15, 0
s_lshl_b32 s7, s4, 3
s_waitcnt lgkmcnt(0)
global_load_short_d16_hi v10, v2, s[10:11]
global_load_short_d16_hi v11, v2, s[12:13]
global_load_short_d16_hi v12, v2, s[14:15]
global_load_short_d16_hi v13, v2, s[16:17]
global_load_short_d16_hi v14, v2, s[18:19]
global_load_short_d16_hi v15, v2, s[20:21]
s_load_dwordx2 s[58:59], s[22:23], s7
s_load_dwordx2 s[60:61], s[24:25], s7
s_load_dword s42, s[40:41], 0
v_mov_b32 v4, 0
v_mov_b32 v5, 0
v_mov_b32 v6, 0
v_mov_b32 v7, 0
v_and_b32 v3, 255, v0
v_lshl_add_u32 v216, v3, 11, s7
v_add_u32 v217, 0x80000, v216
v_add_u32 v218, 0x100000, v216
v_add_u32 v219, 0x180000, v216
s_cmp_ge_u32 s3, 4
s_cbranch_scc1 L_row_pre
s_lshl_b32 s73, s5, 17
s_lshl_b32 s74, s3, 15
s_add_u32 s73, s73, s74
s_add_u32 s73, s73, s7
v_and_b32 v3, 31, v1
v_lshl_add_u32 v3, v3, 10, s73
global_load_dword v8, v3, s[8:9]
s_getpc_b64 s[56:57]
L_pc1:
s_add_u32 s56, s56, L_table-L_pc1
s_addc_u32 s57, s57, 0
v_lshlrev_b32 v3, 4, v1
v_add_u32 v9, 4096, v3
v_add_u32 v16, 8192, v3
''')
for q in range(11):
    dst = CT+4*q if q<9 else BOX+4*(q-9)
    a('global_load_dwordx4 v[%d:%d], v%d, s[56:57] offset:%d'%(dst,dst+3,(3,9,16)[q>>2],1024*(q&3)))
a('''
s_mul_i32 s73, s43, %d
v_lshl_add_u32 v3, v1, 3, s73
ds_write_b64 v3, v[4:5] offset:%d          ; zero rows before t=0
s_mul_i32 s74, s43, %d
v_lshl_add_u32 v3, v1, 2, s74
s_mov_b64 exec, 0xffff
ds_write_b32 v3, v4 offset:%d              ; zero taps l<0 (and a little more)
ds_write_b32 v3, v4 offset:%d              ; zero far taps below 1032
v_lshlrev_b32 v3, 2, v1
ds_write_b32 v3, v4 offset:%d              ; flags
s_mov_b64 exec, -1
s_waitcnt lgkmcnt(0)
s_barrier
s_waitcnt vmcnt(12)
s_branch L_kgen
L_row_pre:
'''%(USTR,UB,KSTR,KB+KN-0,KB+KF,0))
for p in range(4):
    for e in range(2):
        a('global_load_dwordx2 v[%d:%d], v%d, s[8:9] offset:%d'%(XR+4*p+2*e,XR+4*p+2*e+1,216+p,1024*e))
a('''
s_setprio 2
s_waitcnt lgkmcnt(0)
s_barrier
s_waitcnt vmcnt(8)
L_kgen:
''')
stamp(1)
W1=20; W8=22; W128=24; W2=26; W4=28; E=30; E2=32; T0=34; T1=36; PK=38
YF=48; XF=(64,80); DK=96
a('''
s_or_b32 s42, s42, 1
s_add_u32 s42, s42, 0x%x
s_lshl_b32 s7, s43, 4
s_lshr_b64 s[58:59], s[58:59], s7
s_lshl_b32 s58, s58, 16
v_mov_b32 v16, 0x%x
v_mul_f32 v17, s58, v16
v_exp_f32 v17, v17
s_lshl_b32 m0, s3, 8
v_and_b32 v2, 15, v1
v_mul_u32_u24 v2, %d, v2
v_cvt_pk_bf16_f32 v17, v17, v17
v_and_b32 v17, 0xffff0000, v17            ; dt
v_mul_f32 v18, v17, v16
v_mul_f32 v19, 0.15915494, v17
v_mul_f32 v10, v10, v18                   ; dt*A_re*log2(e)
v_mul_f32 v11, v11, v19                   ; dt*A_im/(2 pi)
v_and_b32 v3, 48, v1
v_add3_u32 v2, v2, v3, m0                 ; fragment read address
'''%(TAGC,fbits(LOG2E),SROW))
def cmul(d,x,y):
    a('v_pk_mul_f32 %s, %s, %s op_sel:[0,0] op_sel_hi:[1,0]'%(vr(d,2),vr(x,2),vr(y,2)))
    a('v_pk_fma_f32 %s, %s, %s, %s op_sel:[1,1,0] op_sel_hi:[0,1,1] neg_lo:[0,1,0]'%(vr(d,2),vr(x,2),vr(y,2),vr(d,2)))
def anchor(d,s,conj=False):
    if s!=1:
        a('v_mul_f32 v40, 0x%x, v10'%fbits(float(s)))
        a('v_mul_f32 v41, 0x%x, v11'%fbits(float(s)))
        a('v_exp_f32 v40, v40'); a('v_fract_f32 v41, v41')
    else:
        a('v_exp_f32 v40, v10'); a('v_fract_f32 v41, v11')
    a('v_cos_f32 v%d, v41'%d)
    a('v_sin_f32 v%d, v41'%(d+1))
    a('v_pk_mul_f32 %s, %s, v[40:41] op_sel:[0,0] op_sel_hi:[1,0]%s'%(vr(d,2),vr(d,2),' neg_hi:[1,0]' if conj else ''))
pkt=[0]
ldsops=[0]
def put(row,src):
    t=PK+(pkt[0]&1); pkt[0]+=1
    a('v_cvt_pk_bf16_f32 v%d, v%d, v%d'%(t,src,src+1))
    a('ds_write_addtid_b32 v%d offset:%d'%(t,SB+row*SROW)); ldsops[0]+=1
def rdfrags(dst):
    for s in range(4):
        a('ds_read_b128 %s, v2 offset:%d'%(vr(dst+4*s,4),SB+64*s)); ldsops[0]+=1
    return ldsops[0]
def mm(tile,xf,mark):
    a('s_waitcnt lgkmcnt(%d)'%min(15,ldsops[0]-mark))
    for s in range(4):
        a('v_mfma_f32_16x16x32_bf16 %s, %s, %s, %s'%(vr(DK+4*tile,4),vr(xf+4*s,4),vr(YF+4*s,4),'0' if s==0 else vr(DK+4*tile,4)))
anchor(W8,8,conj=True)
a('v_mov_b32 v42, 0x3f80')
a('ds_write_addtid_b32 v42 offset:%d'%SB); ldsops[0]+=1
put(1,W8)
cur=W8
for m in range(2,16):
    nxt=T0 if cur!=T0 else T1
    cmul(nxt,cur,W8); put(m,nxt); cur=nxt
rdfrags(YF)
anchor(W1,1); anchor(W128,128)
a('v_pk_mul_f32 v[12:13], v[12:13], v[16:17] op_sel:[0,1] op_sel_hi:[1,1]')
cmul(E,14,12)
Ec=[E]
def nextE():
    n=E2 if Ec[0]==E else E
    cmul(n,Ec[0],W128); Ec[0]=n
def chain(row,n,w):
    put(row,Ec[0]); cur=Ec[0]
    for i in range(1,n):
        nxt=T0 if cur!=T0 else T1
        cmul(nxt,cur,w); put(row+i,nxt); cur=nxt
chain(0,8,W1); nextE(); chain(8,8,W1)
mk0=rdfrags(XF[0])
cmul(W2,W1,W1); cmul(W4,W2,W2)
nextE(); chain(0,4,W2); nextE(); chain(4,4,W2)
mm(0,XF[0],mk0)
for k in range(4):
    nextE(); chain(8+2*k,2,W4)
mk1=rdfrags(XF[1])
for k in range(9):
    nextE(); put(k,Ec[0])
    if k==4: mm(1,XF[1],mk1)
mk2=rdfrags(XF[0])
a('''
s_mul_i32 s7, s43, 3072
v_lshl_add_u32 v3, v1, 4, s7
s_lshl_b32 s7, s43, 2
s_add_u32 s7, s7, %d
v_mov_b32 v4, s7
'''%FL)
mm(2,XF[0],mk2)
stamp(2)
a('''
s_cmp_ge_u32 s3, 4
s_cbranch_scc1 L_row
''')
UFB=8; NUF=10; ACC=48; AF=64; FK=204; WF=220; D7=236; D9=240
a('; ---- matrix wave: finish K, build Toeplitz fragments ----')
a('s_waitcnt vmcnt(0)')
a('s_mul_i32 s74, s43, %d'%KSTR)
for e in ADDR_ENTRIES: a('v_add_u32 v%d, s74, v%d'%(CT+e,CT+e))
a('''
s_mov_b32 s70, 0
L_pd_wait:
ds_read_b32 v5, v4
ds_read_b128 v[48:51], v3 offset:%d
ds_read_b128 v[52:55], v3 offset:%d
ds_read_b128 v[56:59], v3 offset:%d
s_waitcnt lgkmcnt(0)
v_cmp_eq_u32 vcc, 0, v5
s_cbranch_vccz L_pd_ok
s_add_u32 s70, s70, 1
s_cmp_lt_u32 s70, %d
s_cbranch_scc1 L_pd_wait
L_pd_ok:
'''%(PD,PD+1024,PD+2048,SPIN*10))
for i in range(6): a('v_pk_add_f32 %s, %s, %s'%(vr(48+2*i,2),vr(48+2*i,2),vr(DK+2*i,2)))
for i in range(6): a('v_cvt_pk_bf16_f32 v%d, v%d, v%d'%(8+i,48+2*i,49+2*i))
a('''
ds_write_b64 v%d, v[8:9]
ds_write_b32 v%d, v10
ds_write_b32 v%d, v11
ds_write_b16 v%d, v12
ds_write_b16_d16_hi v%d, v12 offset:32
ds_write_b16 v%d, v13 offset:64
ds_write_b16_d16_hi v%d, v13 offset:96
'''%(CT+11,CT+31,CT+32,CT+33,CT+34,CT+34,CT+34))
def af(c): return AF+4*((c-1)//2)
jobs=[]
for c in range(1,66,2):
    if c<16:
        o=8*(c-1)
        rd=[('r2',0,CT+0,o,o+1),('r2',2,CT+0,o+2,o+3),('r1',4,CT+0,4*(o+4))]
        pm=[(4-k,3-k,CT+12) for k in range(4)]
    elif c==17:
        rd=[('r2',2*k,CT+3+k,0,1) for k in range(4)]
        pm=[(2*k+1,2*k,CT+19+k) for k in range(4)]
    elif c<32:
        o=4*(c-19)
        rd=[('r2',0,CT+1,o,o+1),('r1',2,CT+1,4*(o+2))]
        pm=[(2,1,CT+13),(2,1,CT+14),(1,0,CT+13),(1,0,CT+14)]
    elif c==33:
        rd=[('r2',2*h,CT+7+h,0,1) for h in range(2)]
        pm=[(1,0,CT+23),(1,0,CT+24),(3,2,CT+25),(3,2,CT+26)]
    elif c<64:
        o=2*(c-35)
        rd=[('r2',0,CT+2,o,o+1)]
        pm=[(1,0,CT+15+k) for k in range(4)]
    else:
        rd=[('r2',0,CT+9,0,1)]
        pm=[(1,0,CT+27+k) for k in range(4)]
    jobs.append((c,rd,pm))
RING=[16,24,32,40,48,56]
cnt=0; marks=[]
def issue(j):
    global cnt
    c,rd,pm=jobs[j]; t=RING[j%len(RING)]
    for r in rd:
        if r[0]=='r2': a('ds_read2_b32 %s, v%d offset0:%d offset1:%d'%(vr(t+r[1],2),r[2],r[3],r[4]))
        else: a('ds_read_b32 v%d, v%d offset:%d'%(t+r[1],r[2],r[3]))
        cnt+=1
    marks.append(cnt)
AHEAD=4
for j in range(AHEAD): issue(j)
for j in range(len(jobs)):
    if j+AHEAD<len(jobs): issue(j+AHEAD)
    elif j+AHEAD==len(jobs):
        for dl in range(4):
            a('ds_read2_b32 %s, v%d offset0:%d offset1:%d'%(vr(FK+4*dl,2),CT+10,16*dl+3,16*dl+2))
            a('ds_read2_b32 %s, v%d offset0:%d offset1:%d'%(vr(FK+4*dl+2,2),CT+10,16*dl+1,16*dl)); cnt+=2
    a('s_waitcnt lgkmcnt(%d)'%min(15,cnt-marks[j]))
    c,rd,pm=jobs[j]; t=RING[j%len(RING)]
    for k,(hi,lo,sel) in enumerate(pm):
        a('v_perm_b32 v%d, v%d, v%d, v%d'%(af(c)+k,t+hi,t+lo,sel))
a('''
v_and_b32 v2, 15, v1
v_and_b32 v3, 48, v1
s_mul_i32 s7, s43, %d
v_lshl_add_u32 v4, v2, 5, v3
v_add_u32 v4, s7, v4                      ; u fragment base
s_lshl_b32 s7, s43, 13
s_add_u32 s7, s7, %d
v_lshl_add_u32 v5, v2, 6, v3
v_add_u32 v5, s7, v5                      ; y write base
s_lshl_b32 s7, s4, 12
s_add_u32 s7, s7, %d
v_lshl_add_u32 v6, v1, 4, s7              ; inbox address
s_waitcnt lgkmcnt(0)
'''%(USTR,YB,WS_INBOX))
stamp(3)
prog=[]
for P in range(4):
    t0,t1=2*P,2*P+1
    for rho in range(8):
        r=2*rho+1
        lo=max(0,t0-3)
        if rho==0 and P>=2: prog.append(('m',t0,af(65),(t0-4,r,0)))
        for ip in range(lo,t1+1):
            for t in (t0,t1):
                j=t-ip
                if 0<=j<=3: prog.append(('m',t,af(16*j+r),(ip,r,0)))
                elif j==4 and rho==0 and P>=2: prog.append(('m',t,af(65),(ip,r,0)))
            if P==1 and rho==0:
                prog.append(('box',ip,7,(ip,1,0)))
                prog.append(('box',ip,9,(ip,1,1)))
                if ip>0: prog.append(('wpack',ip-1))
        if P==1 and rho==1: prog.append(('wpack',3))
        if P>=2 and rho==3:
            for t in (t0,t1):
                for ip in range(0,t-3): prog.append(('far',t,ip,t-ip-4))
    prog.append(('end',P))
uses=[]
seen={}
for n,o in enumerate(prog):
    if o[0]=='end': seen={}
    if o[0] in ('m','box'):
        k=o[3]
        if k in seen: uses[seen[k]][2]=n
        else: seen[k]=len(uses); uses.append([k,n,n])
opfrag={}
for ui,(k,f,l) in enumerate(uses):
    for n in range(f,l+1):
        if prog[n][0] in ('m','box') and prog[n][3]==k: opfrag[n]=ui
avail_bar=lambda k: min(k[0]>>1,2)
cnt=0; mark={}; slot={}; free=list(range(NUF)); nxt=0; bars=0; started=set()
def try_issue(n):
    global cnt,nxt
    while nxt<len(uses) and free and avail_bar(uses[nxt][0])<=bars:
        k=uses[nxt][0]; s=free.pop(0); slot[nxt]=s
        off=UB+512+512*k[0]-32*k[1]-16*k[2]
        a('ds_read_b128 %s, v4 offset:%d'%(vr(UFB+4*s,4),off)); cnt+=1; mark[nxt]=cnt; nxt+=1
def accreg(t): return ACC+4*(t&3)
a('s_barrier')
waited=-1
for n,o in enumerate(prog):
    try_issue(n)
    if o[0] in ('m','box'):
        ui=opfrag[n]
        assert ui in slot, (n,o)
        if ui>waited:
            a('s_waitcnt lgkmcnt(%d)'%min(15,cnt-mark[ui])); waited=ui
        f=vr(UFB+4*slot[ui],4)
        if o[0]=='m':
            t=o[1]; c='0' if t not in started else vr(accreg(t),4); started.add(t)
            a('v_mfma_f32_16x16x32_bf16 %s, %s, %s, %s'%(vr(accreg(t),4),vr(o[2],4),f,c))
        else:
            d=(D7 if o[2]==7 else D9)+8*(o[1]&1)
            a('v_mfma_f32_16x16x32_bf16 %s, %s, %s, 0'%(vr(d,4),f,vr(BOX+(0 if o[2]==7 else 4),4)))
        if uses[ui][2]==n: free.append(slot[ui])
    elif o[0]=='wpack':
        ip=o[1]
        for i in range(4): a('v_cvt_pk_bf16_f32 v%d, v%d, v%d'%(WF+4*ip+i,D7+8*(ip&1)+i,D9+8*(ip&1)+i))
    elif o[0]=='far':
        t=o[1]
        a('v_mfma_f32_16x16x32_bf16 %s, %s, %s, %s'%(vr(accreg(t),4),vr(WF+4*o[2],4),vr(FK+4*o[3],4),vr(accreg(t),4)))
    else:
        P=o[1]
        for t in (2*P,2*P+1):
            a('ds_write_b128 v5, %s offset:%d'%(vr(accreg(t),4),1024*t)); cnt+=1
        a('s_waitcnt lgkmcnt(0)'); waited=nxt-1
        a('s_barrier'); bars+=1
        stamp(4+P)
IB=8
a('''
s_cmp_lg_u32 s3, 0
s_cbranch_scc1 L_mat_tail
s_mov_b32 s70, 0
v_mov_b32 v20, 0
v_mov_b32 v21, 0
L_inbox_poll:
v_mov_b32 v23, s42
global_load_dwordx4 v[8:11], v6, s[40:41] sc1
global_load_dwordx4 v[12:15], v6, s[40:41] offset:1024 sc1
global_load_dwordx4 v[16:19], v6, s[40:41] offset:2048 sc1
s_mov_b32 exec_hi, 0
global_load_dwordx4 v[20:23], v6, s[40:41] offset:3072 sc1
s_mov_b64 exec, -1
s_waitcnt vmcnt(0)
v_cmp_ne_u32 vcc, s42, v11
v_cmp_ne_u32 s[74:75], s42, v15
v_cmp_ne_u32 s[76:77], s42, v19
v_cmp_ne_u32 s[78:79], s42, v23
s_or_b64 vcc, vcc, s[74:75]
s_or_b64 s[76:77], s[76:77], s[78:79]
s_or_b64 vcc, vcc, s[76:77]
s_cbranch_scc0 L_inbox_ok
v_mov_b32 v24, 0
global_load_dword v25, v24, s[38:39] sc0 sc1
s_waitcnt vmcnt(0)
v_readfirstlane_b32 s7, v25
s_cmp_lg_u32 s7, 0
s_cselect_b32 s42, s7, s42
s_add_u32 s70, s70, 1
s_cmp_lt_u32 s70, %d
s_cbranch_scc1 L_inbox_poll
L_inbox_ok:
v_and_b32 v10, 0x7ff, v10                 ; routed row of this lane's token
v_lshlrev_b32 v24, 3, v10
v_add_u32 v24, %d, v24
ds_read_b64 v[40:41], v24                 ; x
v_lshlrev_b32 v24, 1, v10
v_lshlrev_b32 v25, 2, v10
v_add_u32 v25, %d, v25
'''%(SPIN,XS,YB))
for ch in range(4):
    a('ds_read_u16 v%d, v24 offset:%d'%(44+ch,UB+512+USTR*ch))
    a('ds_read_b32 v%d, v25 offset:%d'%(48+ch,8192*ch))
for q in range(4):
    for h in range(2):
        src=8+4*q+h
        if q==0:
            a('v_lshlrev_b32 v%d, 16, v%d'%(28+2*h,src)); a('v_and_b32 v%d, 0xffff0000, v%d'%(29+2*h,src))
        else:
            a('v_lshlrev_b32 v32, 16, v%d'%src); a('v_and_b32 v33, 0xffff0000, v%d'%src)
            a('v_pk_add_f32 %s, %s, v[32:33]'%(vr(28+2*h,2),vr(28+2*h,2)))
for sh in (8,4,2):
    for i in range(4): a('v_add_f32_dpp v%d, v%d, v%d row_ror:%d'%(28+i,28+i,28+i,sh)+DPP)
for sw in ('16','32'):
    for i in range(4): a('v_mov_b32 v%d, v%d'%(32+i,28+i))
    for i in range(4): a('v_permlane%s_swap_b32 v%d, v%d'%(sw,28+i,32+i))
    for i in range(4): a('v_add_f32 v%d, v%d, v%d'%(28+i,28+i,32+i))
a('''
s_lshl_b32 s62, s60, 16
s_and_b32 s63, s60, 0xffff0000
s_lshl_b32 s64, s61, 16
s_and_b32 s65, s61, 0xffff0000
s_lshl_b32 s7, s4, 3
v_lshl_add_u32 v24, v10, 10, s7
s_waitcnt lgkmcnt(0)
v_lshlrev_b32 v36, 16, v40
v_and_b32 v37, 0xffff0000, v40
v_lshlrev_b32 v38, 16, v41
v_and_b32 v39, 0xffff0000, v41
''')
for i in range(4): a('v_lshlrev_b32 v%d, 16, v%d'%(44+i,44+i))
for i in range(4): a('v_add_f32 v%d, v%d, v%d'%(28+i,28+i,44+i))
for i in range(4): a('v_mul_f32 v%d, 0x%x, v%d'%(32+i,fbits(-LOG2E),28+i))
for i in range(4): a('v_exp_f32 v%d, v%d'%(32+i,32+i))
for i in range(4): a('v_fma_f32 v%d, v%d, s%d, v%d'%(48+i,44+i,62+i,48+i))
for i in range(4): a('v_add_f32 v%d, 1.0, v%d'%(32+i,32+i))
for i in range(4): a('v_rcp_f32 v%d, v%d'%(32+i,32+i))
for i in range(4): a('v_mul_f32 v%d, v%d, v%d'%(28+i,28+i,48+i))
for i in range(4): a('v_fma_f32 v%d, v%d, v%d, v%d'%(36+i,28+i,32+i,36+i))
a('''
v_cvt_pk_bf16_f32 v36, v36, v37
v_cvt_pk_bf16_f32 v37, v38, v39
s_barrier
s_mov_b64 exec, 3
global_store_dwordx2 v24, v[36:37], s[36:37]
''')
if STAMP:
    stamp(8); a('s_waitcnt vmcnt(0)'); stamp(9); stamp_out(10,[(1,8),(2,9),(3,10),(4,11),(7,12),(9,13)])
a('''
s_endpgm
L_mat_tail:
''')
if STAMP:
    stamp(8); stamp(9); stamp_out(10,[])
a('s_endpgm')

XFp=64; G=96; XN=112; GG=144; ST=176; YT=8; OT=24
a('''
L_row:
; ---- row wave: hand the partial K over, normalise, gate, write out ----
v_mov_b32 v5, 1
s_nop 4
ds_write_b128 v3, v[96:99] offset:%d
ds_write_b128 v3, v[100:103] offset:%d
ds_write_b128 v3, v[104:107] offset:%d
ds_write_b32 v4, v5
s_lshl_b32 s7, s43, 8
s_add_u32 m0, s7, %d
v_subrev_u32 v2, 256, v0
v_lshlrev_b32 v3, 4, v2
v_add_u32 v4, %d, v3                      ; stats granule address
v_add_u32 v5, 8192, v4
v_add_u32 v3, %d, v3                      ; x stash address
v_lshlrev_b32 v6, 3, v2
v_add_u32 v6, %d, v6                      ; y read address
s_lshl_b32 s62, s60, 16
s_and_b32 s63, s60, 0xffff0000
s_lshl_b32 s64, s61, 16
s_and_b32 s65, s61, 0xffff0000
s_mov_b32 s66, 0x%x
s_mov_b32 s67, 0x%x
s_mov_b32 s70, 0
s_waitcnt vmcnt(0)
'''%(PD,PD+1024,PD+2048,UB+512,WS_STATS+4096,XS,YB,fbits(-LOG2E),fbits(-LOG2E)))
def polls():
    a('''
global_load_dwordx4 v[96:99], v4, s[40:41] offset:-4096 sc1
global_load_dwordx4 v[100:103], v4, s[40:41] sc1
global_load_dwordx4 v[104:107], v5, s[40:41] offset:-4096 sc1
global_load_dwordx4 v[108:111], v5, s[40:41] sc1
''')
polls()
for p in range(4):
    a('ds_write_b128 v3, %s offset:%d'%(vr(XR+4*p,4),4096*p))
    for e in range(2):
        for hh in range(2):
            src=XR+4*p+2*e+hh
            a('v_lshlrev_b32 v%d, 16, v%d'%(XFp+8*p+4*hh+e,src))
            a('v_and_b32 v%d, 0xffff0000, v%d'%(XFp+8*p+4*hh+2+e,src))
stamp(3)
a('''
L_row_check:
s_waitcnt vmcnt(0)
v_cmp_ne_u32 vcc, s42, v99
v_cmp_ne_u32 s[74:75], s42, v103
v_cmp_ne_u32 s[76:77], s42, v107
v_cmp_ne_u32 s[78:79], s42, v111
s_or_b64 vcc, vcc, s[74:75]
s_or_b64 s[76:77], s[76:77], s[78:79]
s_or_b64 vcc, vcc, s[76:77]
s_cbranch_scc0 L_row_ok
s_add_u32 s70, s70, 1
s_cmp_ge_u32 s70, %d
s_cbranch_scc1 L_row_ok
s_and_b32 s7, s70, 15
s_cbranch_scc1 L_row_repoll
v_mov_b32 v8, 0
global_load_dword v9, v8, s[38:39] sc0 sc1
s_waitcnt vmcnt(0)
v_readfirstlane_b32 s7, v9
s_cmp_lg_u32 s7, 0
s_cselect_b32 s42, s7, s42
L_row_repoll:
s_sleep 2
'''%SPIN)
polls()
a('''
s_branch L_row_check
L_row_ok:
''')
stamp(4)
def norm(p):
    g=G+4*p
    a('v_and_b32 v%d, 0xffff0000, v%d'%(ST,g)); a('v_and_b32 v%d, 0xffff0000, v%d'%(ST+1,g+1))
    a('v_rcp_f32 v%d, v%d'%(ST,ST)); a('v_rcp_f32 v%d, v%d'%(ST+1,ST+1))
    a('v_lshlrev_b32 v%d, 16, v%d'%(ST+2,g)); a('v_lshlrev_b32 v%d, 16, v%d'%(ST+3,g+1))
    a('v_pk_mul_f32 %s, %s, %s neg_lo:[1,0] neg_hi:[1,0]'%(vr(ST+2,2),vr(ST+2,2),vr(ST,2)))
    for ch in range(4):
        a('v_pk_fma_f32 %s, %s, %s, %s'%(vr(XN+8*p+2*ch,2),vr(XFp+8*p+2*ch,2),vr(ST,2),vr(ST+2,2)))
    for ch in range(4):
        a('v_cvt_pk_bf16_f32 v%d, v%d, v%d'%(ST+4+ch,XN+8*p+2*ch,XN+8*p+2*ch+1))
        a('ds_write_addtid_b32 v%d offset:%d'%(ST+4+ch,USTR*ch+1024*p))
def gc(p):
    for ch in range(4):
        a('v_pk_mul_f32 %s, %s, s[66:67]'%(vr(GG+8*p+2*ch,2),vr(XN+8*p+2*ch,2)))
    for i in range(8): a('v_exp_f32 v%d, v%d'%(GG+8*p+i,GG+8*p+i))
    for ch in range(4):
        a('v_pk_add_f32 %s, %s, 1.0 op_sel_hi:[1,0]'%(vr(GG+8*p+2*ch,2),vr(GG+8*p+2*ch,2)))
    for i in range(8): a('v_rcp_f32 v%d, v%d'%(GG+8*p+i,GG+8*p+i))
    for ch in range(4):
        a('v_pk_mul_f32 %s, %s, %s'%(vr(GG+8*p+2*ch,2),vr(GG+8*p+2*ch,2),vr(XN+8*p+2*ch,2)))
    for ch in range(4):
        sp=62+(ch&2); o=ch&1
        a('v_pk_mul_f32 %s, %s, s[%d:%d] op_sel:[0,%d] op_sel_hi:[1,%d]'%(vr(XN+8*p+2*ch,2),vr(XN+8*p+2*ch,2),sp,sp+1,o,o))
    for ch in range(4):
        a('v_pk_fma_f32 %s, %s, %s, %s'%(vr(XFp+8*p+2*ch,2),vr(XN+8*p+2*ch,2),vr(GG+8*p+2*ch,2),vr(XFp+8*p+2*ch,2)))
def final(p):
    for ch in range(4): a('ds_read_b64 %s, v6 offset:%d'%(vr(YT+2*ch,2),8192*ch+2048*p))
    for ch in range(4):
        a('s_waitcnt lgkmcnt(%d)'%(3-ch))
        a('v_pk_fma_f32 %s, %s, %s, %s'%(vr(YT+2*ch,2),vr(YT+2*ch,2),vr(GG+8*p+2*ch,2),vr(XFp+8*p+2*ch,2)))
    o=OT+4*p
    for e in range(2):
        a('v_cvt_pk_bf16_f32 v%d, v%d, v%d'%(o+2*e,YT+e,YT+2+e))
        a('v_cvt_pk_bf16_f32 v%d, v%d, v%d'%(o+2*e+1,YT+4+e,YT+6+e))
        a('global_store_dwordx2 v%d, %s, s[36:37] offset:%d'%(216+p,vr(o+2*e,2),1024*e))
def bar(): a('s_waitcnt lgkmcnt(0)\ns_barrier')
norm(0); bar()
norm(1); gc(0); bar()
stamp(5)
final(0); norm(2); norm(3); gc(1); bar()
stamp(6)
final(1); gc(2); gc(3); bar()
final(2); bar()
stamp(7)
final(3); a('s_barrier')
if STAMP:
    stamp(8); a('s_waitcnt vmcnt(0)'); stamp(9); stamp_out(10,[(4,14),(9,15)])
a('''
L_end:
s_endpgm
''')

body=a.render()
body=body.replace('v_lshlrev_b32 v3, 2, v1\n    ds_write_b32 v3, v4 offset:0              ; flags',
                  'v_lshlrev_b32 v3, 2, v1\n    v_add_u32 v3, %d, v3\n    ds_write_b32 v3, v4              ; flags'%FL)
assert 'ds_write_b32 v3, v4              ; flags' in body
T=build_table()
tab=['.p2align 7','.type L_table,@object','L_table:']
for q in range(11):
    for lane in range(64):
        tab.append('.long '+', '.join('0x%08x'%v for v in T[lane,4*q:4*q+4]))
tab.append('L_code_end:')
hdr=open('cdna_kernels/%s.s.ref'%NAME).read().split('; Override')[0]
src=hdr+'''; One launch, 256 workgroups of 8 waves (one per CU): 128 "aux" workgroups (LayerNorm statistics,
; router score, routed SwiGLU FFN) and 128 "conv" workgroups (S4D kernel generation + causal
; convolution on the matrix cores + gating/residual).  Generated by gen/gen.py.
; @launch grid=(256,1,1) block=(512,1,1) lds=%d
.amdgcn_target "amdgcn-amd-amdhsa--gfx950"
.text
.globl %s_kernel
.p2align 8
.type %s_kernel,@function
%s_kernel:
'''%(LDS,NAME,NAME,NAME)+body+'\n'.join(tab)+'''
.section .rodata,"a"
.p2align 6
.amdhsa_kernel %s_kernel
  .amdhsa_next_free_vgpr 256
  .amdhsa_next_free_sgpr 102
  .amdhsa_accum_offset 256
  .amdhsa_group_segment_fixed_size 0
  .amdhsa_kernarg_size 136
  .amdhsa_user_sgpr_count 2
  .amdhsa_user_sgpr_kernarg_segment_ptr 1
  .amdhsa_system_sgpr_workgroup_id_x 1
.end_amdhsa_kernel
'''%NAME
open(OUT,'w').write(src)
print('wrote',OUT,'nops',a.nnops,'mfma ops',sum(1 for o in prog if o[0] in('m','box','far')),'frag loads',len(uses))
```
